```python
import torch

def _softmax(x, axis=-1):
    return torch.softmax(x, dim=axis)
def _gelu(x):
    return torch.nn.functional.gelu(x, approximate="tanh")
def _silu(x):
    return torch.nn.functional.silu(x)
def _sigmoid(x):
    return torch.sigmoid(x)
def _layernorm(x, axis=-1, eps=1e-5):
    m = x.mean(dim=axis, keepdim=True)
    v = x.var(dim=axis, keepdim=True, unbiased=False)
    return (x - m) / torch.sqrt(v + eps)
def _scatter_add(tgt, idx, src, axis=0):
    return tgt.clone().index_add_(axis, idx, src)
def _segment_sum(src, seg, n):
    out = torch.zeros((n,) + src.shape[1:], dtype=src.dtype)
    return out.index_add_(0, seg, src)
def _pad(x, pw):
    flat = tuple(v for pair in reversed(pw) for v in pair)
    return torch.nn.functional.pad(x, flat)

kernel_name = 'concat_heads__gqa_block_cached__gqa_block_cached__near_ridge'

def setup_inputs():

    _w = (lambda a: (lambda t: t.to(torch.bfloat16) if t.is_floating_point() else t)(torch.as_tensor(a)))
    def _A_setup():
        B, Sq, D = 16, 48, 512
        Hq, Hkv, Sk, Dh = 32, 8, 512, 128
        assert Hq % Hkv == 0, (Hq, Hkv)
        return {
            "x": _w((lambda *s: torch.randn(*s, dtype=torch.bfloat16) * 0.8)(B, Sq, D)),
            "k_cache": _w((lambda *s: torch.randn(*s, dtype=torch.bfloat16) * 0.8)(B, Hkv, Sk, Dh)),
            "v_cache": _w((lambda *s: torch.randn(*s, dtype=torch.bfloat16) * 0.05)(B, Hkv, Sk, Dh)),
            "wq": _w((lambda *s: torch.randn(*s, dtype=torch.bfloat16) * 0.8)(D, Hq * Dh) * (D ** -0.5)),
            "wo": _w((lambda *s: torch.randn(*s, dtype=torch.bfloat16) * 0.05)(Hq * Dh, D) * ((Hq * Dh) ** -0.5)),
        }
    _A_in = _A_setup()

    def _B_setup():
        B, Sq, D = 16, 48, 512
        Hq, Hkv, Sk, Dh = 32, 8, 512, 128
        assert Hq % Hkv == 0, (Hq, Hkv)
        return {
            "x": _w((lambda *s: torch.randn(*s, dtype=torch.bfloat16) * 0.8)(B, Sq, D)),
            "k_cache": _w((lambda *s: torch.randn(*s, dtype=torch.bfloat16) * 0.8)(B, Hkv, Sk, Dh)),
            "v_cache": _w((lambda *s: torch.randn(*s, dtype=torch.bfloat16) * 0.05)(B, Hkv, Sk, Dh)),
            "wq": _w((lambda *s: torch.randn(*s, dtype=torch.bfloat16) * 0.8)(D, Hq * Dh) * (D ** -0.5)),
            "wo": _w((lambda *s: torch.randn(*s, dtype=torch.bfloat16) * 0.05)(Hq * Dh, D) * ((Hq * Dh) ** -0.5)),
        }
    _B_in = _B_setup()

    return {
        "A_x": _A_in["x"],
        "A_k_cache": _A_in["k_cache"],
        "A_v_cache": _A_in["v_cache"],
        "A_wq": _A_in["wq"],
        "A_wo": _A_in["wo"],
        "B_x": _B_in["x"],
        "B_k_cache": _B_in["k_cache"],
        "B_v_cache": _B_in["v_cache"],
        "B_wq": _B_in["wq"],
        "B_wo": _B_in["wo"],
    }

def reference(A_x, A_k_cache, A_v_cache, A_wq, A_wo, B_x, B_k_cache, B_v_cache, B_wq, B_wo):
    def _A_ref(x, k_cache, v_cache, wq, wo):
        B, Sq, D = x.shape
        Hq, Dh = 32, 128
        Hkv = k_cache.shape[1]
        rep = Hq // Hkv
        q = (lambda x, *d: x.permute(*d))((x @ wq).reshape(B, Sq, Hq, Dh), 0, 2, 1, 3)
        k = (lambda x, n, axis: torch.repeat_interleave(x, n, dim=axis))(k_cache, rep, axis=1)
        v = (lambda x, n, axis: torch.repeat_interleave(x, n, dim=axis))(v_cache, rep, axis=1)
        scores = torch.einsum("bhqd,bhkd->bhqk", q, k) * (Dh ** -0.5)
        p = _softmax(scores, axis=-1)
        o = torch.einsum("bhqk,bhkd->bhqd", p, v)
        return (lambda x, *d: x.permute(*d))(o, 0, 2, 1, 3).reshape(B, Sq, Hq * Dh) @ wo

    def _B_ref(x, k_cache, v_cache, wq, wo):
        B, Sq, D = x.shape
        Hq, Dh = 32, 128
        Hkv = k_cache.shape[1]
        rep = Hq // Hkv
        q = (lambda x, *d: x.permute(*d))((x @ wq).reshape(B, Sq, Hq, Dh), 0, 2, 1, 3)
        k = (lambda x, n, axis: torch.repeat_interleave(x, n, dim=axis))(k_cache, rep, axis=1)
        v = (lambda x, n, axis: torch.repeat_interleave(x, n, dim=axis))(v_cache, rep, axis=1)
        scores = torch.einsum("bhqd,bhkd->bhqk", q, k) * (Dh ** -0.5)
        p = _softmax(scores, axis=-1)
        o = torch.einsum("bhqk,bhkd->bhqd", p, v)
        return (lambda x, *d: x.permute(*d))(o, 0, 2, 1, 3).reshape(B, Sq, Hq * Dh) @ wo

    a = _A_ref(A_x, A_k_cache, A_v_cache, A_wq, A_wo)
    b = _B_ref(B_x, B_k_cache, B_v_cache, B_wq, B_wo)
    return torch.concatenate([a, b], axis=-1)
```

```python
import re

def _regs(spec):
    out = []
    if spec is None:
        return out
    if isinstance(spec, (list, tuple)):
        for s in spec:
            out += _regs(s)
        return out
    if not isinstance(spec, str):
        return out
    s = spec.strip()
    s = s.lstrip('-')
    m = re.fullmatch(r'abs\((.*)\)', s)
    if m:
        s = m.group(1)
    m = re.fullmatch(r'([vsa])\[(\d+):(\d+)\]', s)
    if m:
        return [(m.group(1), i) for i in range(int(m.group(2)), int(m.group(3)) + 1)]
    m = re.fullmatch(r'([vsa])(\d+)', s)
    if m:
        return [(m.group(1), int(m.group(2)))]
    if s in ('vcc', 'exec'):
        return [(s, 0), (s, 1)]
    if s in ('m0', 'scc'):
        return [(s, 0)]
    return []

class Ins:
    __slots__ = ('text', 'kind', 'rd', 'wr', 'ws', 'extra')
    def __init__(self, text, kind, rd, wr, ws=1, extra=None):
        self.text, self.kind, self.rd, self.wr, self.ws, self.extra = text, kind, set(rd), set(wr), ws, extra

TRANS = ('v_exp_f32', 'v_log_f32', 'v_rcp_f32', 'v_rsq_f32', 'v_sqrt_f32')

class E:
    def __init__(self):
        self.lines = []
        self.hist = []

    def raw(self, text):
        self.lines.append(text)
    def comment(self, t):
        self.lines.append('    ; ' + t)
    def label(self, name):
        self.lines.append(name + ':')
    def fence(self, n=12):
        self.nop(n)

    def nop(self, n):
        while n > 0:
            k = min(n, 16)
            self.lines.append('    s_nop %d' % (k - 1))
            self.hist.append(Ins('s_nop', 'nop', [], [], ws=k))
            n -= k

    def _need(self, ins):
        need = 0
        dist = 0
        for p in reversed(self.hist[-120:]):
            req = 0
            vrd = ins.rd
            vwr = ins.wr
            if p.kind in ('valu', 'trans', 'perm'):
                pw = p.wr
                if ins.kind == 'mfma' and (pw & vrd):
                    req = max(req, 2)
                if p.kind == 'trans' and ins.kind in ('valu', 'perm', 'mfma') and (pw & (vrd | vwr)):
                    req = max(req, 2 if ins.kind == 'mfma' else 1)
                if ins.kind == 'perm' and (pw & vrd):
                    req = max(req, 2)
                if ins.kind == 'rfl' and (pw & vrd):
                    req = max(req, 1)
                sw = {r for r in pw if r[0] in ('s', 'vcc')}
                if sw:
                    if ins.kind in ('vmem', 'dma') and (sw & vrd):
                        req = max(req, 5)
                    if ins.kind in ('valu', 'trans', 'perm', 'rfl') and (sw & vrd):
                        req = max(req, 2)
                    if ins.kind == 'salu' and (sw & vrd):
                        req = max(req, 2)
            if p.kind == 'rfl':
                sw = p.wr
                if ins.kind in ('vmem', 'dma') and (sw & vrd):
                    req = max(req, 5)
                if ins.kind in ('valu', 'trans', 'perm', 'rfl', 'salu') and (sw & vrd):
                    req = max(req, 2)
            if p.kind == 'mfma':
                passes = p.extra['passes']
                d = p.wr
                t_valu = {4: 8, 8: 12}[passes]
                t_ab = {4: 8, 8: 12}[passes]
                t_c_ov = {4: 6, 8: 10}[passes]
                t_war = {4: 3, 8: 7}[passes]
                if ins.kind == 'mfma':
                    ab = ins.extra['ab']
                    c = ins.extra['c']
                    if d & ab:
                        req = max(req, t_ab)
                    if d & c:
                        if ins.extra['cspec'] == p.extra['dspec'] and ins.extra['passes'] == passes:
                            pass
                        else:
                            req = max(req, t_c_ov)
                    elif d & ins.wr:
                        req = max(req, t_c_ov)
                elif ins.kind in ('valu', 'trans', 'perm', 'rfl', 'vmem', 'ds', 'dma'):
                    if d & (vrd | vwr):
                        req = max(req, t_valu)
                    if ins.kind in ('valu', 'trans', 'perm') and (p.extra['c'] & vwr):
                        req = max(req, t_war)
            if p.kind == 'salu':
                if ('m0', 0) in p.wr and ins.kind == 'dma':
                    req = max(req, 1)
            if p.kind == 'vmem' and p.extra and p.extra.get('wide_store'):
                if p.extra['data'] & vwr:
                    req = max(req, 2)
            if req > dist:
                need = max(need, req - dist)
            dist += p.ws
            if dist > 24:
                break
        return need

    def _emit(self, ins):
        n = self._need(ins)
        if n:
            self.nop(n)
        self.lines.append('    ' + ins.text)
        self.hist.append(ins)

    def valu(self, op, dst, *src, rd_extra=(), wr_extra=(), mods=''):
        kind = 'trans' if op.split('_e')[0] in TRANS else 'valu'
        rd = _regs(list(src)) + _regs(list(rd_extra))
        if op.startswith('v_fmac') or op.startswith('v_pk_fmac'):
            rd += _regs(dst)
        wr = _regs(dst) + _regs(list(wr_extra))
        self._emit(Ins('%s %s%s' % (op, ', '.join([dst] + [str(s) for s in src]), (' ' + mods) if mods else ''), kind, rd, wr))
    def perm(self, op, a, b):
        r = _regs(a) + _regs(b)
        self._emit(Ins('%s %s, %s' % (op, a, b), 'perm', r, r))
    def rfl(self, sdst, vsrc):
        self._emit(Ins('v_readfirstlane_b32 %s, %s' % (sdst, vsrc), 'rfl', _regs(vsrc), _regs(sdst)))
    def salu(self, op, dst, *src):
        rd = _regs([str(s) for s in src])
        wr = _regs(dst) + [('scc', 0)]
        self._emit(Ins('%s %s' % (op, ', '.join([dst] + [str(s) for s in src])), 'salu', rd, wr))
    def scmp(self, op, a, b):
        self._emit(Ins('%s %s, %s' % (op, a, b), 'salu', _regs([str(a), str(b)]), [('scc', 0)]))
    def sop(self, text):
        self._emit(Ins(text, 'salu', [], []))
    def smem(self, text, wr):
        self._emit(Ins(text, 'smem', [], _regs(wr)))
    def mfma(self, d, a, b, c, op='v_mfma_f32_16x16x32_bf16', passes=4):
        cr = _regs(str(c))
        ex = dict(passes=passes, ab=set(_regs(a) + _regs(b)), c=set(cr), cspec=str(c), dspec=d)
        self._emit(Ins('%s %s, %s, %s, %s' % (op, d, a, b, c), 'mfma', _regs(a) + _regs(b) + cr, _regs(d), extra=ex))
    def ds_read(self, op, dst, addr, offset=0):
        t = '%s %s, %s' % (op, dst, addr) + (' offset:%d' % offset if offset else '')
        assert 0 <= offset < 65536, offset
        self._emit(Ins(t, 'ds', _regs(addr), _regs(dst)))
    def ds_write(self, op, addr, src, offset=0):
        t = '%s %s, %s' % (op, addr, src) + (' offset:%d' % offset if offset else '')
        assert 0 <= offset < 65536, offset
        self._emit(Ins(t, 'ds', _regs(addr) + _regs(src), []))
    def dma(self, voff, srd, soff, mods=''):
        t = 'buffer_load_dwordx4 %s, %s, %s offen%s lds' % (voff, srd, soff, (' ' + mods) if mods else '')
        self._emit(Ins(t, 'dma', _regs(voff) + _regs(srd) + _regs(str(soff)) + [('m0', 0)], []))
    def bload(self, op, dst, voff, srd, soff, offset=0, mods=''):
        t = '%s %s, %s, %s, %s offen' % (op, dst, voff, srd, soff) + (' offset:%d' % offset if offset else '') + ((' ' + mods) if mods else '')
        self._emit(Ins(t, 'vmem', _regs(voff) + _regs(srd) + _regs(str(soff)), _regs(dst)))
    def bstore(self, op, src, voff, srd, soff, offset=0, mods=''):
        t = '%s %s, %s, %s, %s offen' % (op, src, voff, srd, soff) + (' offset:%d' % offset if offset else '') + ((' ' + mods) if mods else '')
        wide = op.endswith('x4') or op.endswith('x3')
        self._emit(Ins(t, 'vmem', _regs(src) + _regs(voff) + _regs(srd) + _regs(str(soff)), [], extra=dict(wide_store=wide, data=set(_regs(src)))))
    def wait(self, vm=None, lgkm=None):
        parts = []
        if vm is not None:
            assert 0 <= vm <= 63
            parts.append('vmcnt(%d)' % vm)
        if lgkm is not None:
            assert 0 <= lgkm <= 15
            parts.append('lgkmcnt(%d)' % lgkm)
        self._emit(Ins('s_waitcnt ' + ' '.join(parts), 'wait', [], []))
    def barrier(self):
        self._emit(Ins('s_barrier', 'wait', [], []))
    def text(self):
        return '\n'.join(self.lines) + '\n'

def vr(base, n=1):
    return 'v%d' % base if n == 1 else 'v[%d:%d]' % (base, base + n - 1)
def sr(base, n=1):
    return 's%d' % base if n == 1 else 's[%d:%d]' % (base, base + n - 1)
```

```python
import sys
sys.path.insert(0, 'gen')
from emit import E, vr, sr

NAME = "concat_heads__gqa_block_cached__gqa_block_cached__near_ridge"
PITCH = 1056
XBASE = 0
RING = 50688
SLOT = 34304
QBASE = 113152
MLBASE = 153600
XCHG = 50688
LDS_BYTES = 163840
CSCALE = 0.08838834764831845 * 1.4426950408889634

import struct
def f2u(f):
    return struct.unpack('<I', struct.pack('<f', f))[0]

def header():
    src = open('cdna_kernels/%s.s.ref' % NAME).read().split('\n')
    out = []
    for l in src:
        if l.startswith(';') and '@launch' not in l:
            out.append(l)
        elif l.startswith(';'):
            continue
        else:
            break
    return out

def gen():
    e = E()
    K1 = NAME + "_kernel"
    K2 = "gqa_reduce_kernel"
    e.raw('.amdgcn_target "amdgcn-amd-amdhsa--gfx950"')
    e.raw('.text')
    e.raw('.globl %s' % K1)
    e.raw('.p2align 8')
    e.raw('.type %s,@function' % K1)
    e.raw('%s:' % K1)
    e.scmp('s_cmp_ge_u32', 's2', 256)
    e.sop('s_cbranch_scc1 L_end1')
    e.smem('s_load_dwordx16 s[16:31], s[0:1], 0', 's[16:31]')
    e.smem('s_load_dwordx4 s[32:35], s[0:1], 64', 's[32:35]')
    e.smem('s_load_dwordx2 s[38:39], s[0:1], 96', 's[38:39]')
    e.valu('v_lshrrev_b32', 'v2', 6, 'v0')
    e.valu('v_and_b32', 'v1', 63, 'v0')
    e.rfl('s3', 'v2')
    e.salu('s_and_b32', 's4', 's2', 7)
    e.salu('s_lshr_b32', 's5', 's2', 3)
    e.salu('s_and_b32', 's5', 's5', 15)
    e.salu('s_lshr_b32', 's6', 's2', 7)
    e.valu('v_and_b32', 'v2', 15, 'v1')
    e.valu('v_lshrrev_b32', 'v3', 4, 'v1')
    e.valu('v_lshrrev_b32', 'v4', 2, 'v1')
    e.valu('v_and_b32', 'v4', 3, 'v4')
    e.valu('v_and_b32', 'v5', 3, 'v1')
    e.valu('v_lshlrev_b32', 'v6', 4, 'v1')
    e.wait(lgkm=0)
    e.scmp('s_cmp_eq_u32', 's6', 0)
    for (dst, a, b) in ((40, 16, 26), (60, 18, 28), (62, 20, 30), (44, 22, 32), (48, 24, 34)):
        e.sop('s_cselect_b32 s%d, s%d, s%d' % (dst, a, b))
        e.sop('s_cselect_b32 s%d, s%d, s%d' % (dst + 1, a + 1, b + 1))
    e.salu('s_mov_b32', 's42', 16 * 48 * 512 * 2)
    e.salu('s_mov_b32', 's43', 0x20000)
    e.salu('s_mov_b32', 's46', 512 * 4096 * 2)
    e.salu('s_mov_b32', 's47', 0x20000)
    e.salu('s_mov_b32', 's50', 512 * 4096 * 2)
    e.salu('s_mov_b32', 's51', 0x20000)
    e.salu('s_lshr_b32', 's7', 's3', 1)
    e.salu('s_and_b32', 's8', 's7', 1)
    e.scmp('s_cmp_eq_u32', 's8', 0)
    e.sop('s_cselect_b32 s52, s60, s62')
    e.sop('s_cselect_b32 s53, s61, s63')
    e.salu('s_mov_b32', 's54', 16 * 8 * 512 * 128 * 2)
    e.salu('s_mov_b32', 's55', 0x20000)
    e.salu('s_mov_b32', 's56', 's38')
    e.salu('s_mov_b32', 's57', 's39')
    e.salu('s_mov_b32', 's58', 256 * 48 * 512 * 4)
    e.salu('s_mov_b32', 's59', 0x20000)

    e.valu('v_lshlrev_b32', 'v7', 3, 'v3')
    e.valu('v_add_u32', 'v7', 'v7', 'v4')
    e.valu('v_mul_u32_u24', 'v7', PITCH, 'v7')
    e.valu('v_lshlrev_b32', 'v8', 7, 'v3')
    e.valu('v_add_u32', 'v7', 'v7', 'v8')
    e.valu('v_lshlrev_b32', 'v8', 3, 'v5')
    e.valu('v_add_u32', 'v7', 'v7', 'v8')
    e.salu('s_lshl_b32', 's9', 's3', 7)
    e.salu('s_add_u32', 's9', 's9', RING)
    e.valu('v_add_u32', 'v8', 's9', 'v7')
    e.valu('v_add_u32', 'v9', SLOT, 'v8')
    e.valu('v_add_u32', 'v10', 2 * SLOT, 'v8')
    VA = [8, 9, 10]
    e.valu('v_mul_u32_u24', 'v11', PITCH, 'v2')
    e.valu('v_lshlrev_b32', 'v12', 4, 'v3')
    e.valu('v_add_u32', 'v11', 'v11', 'v12')
    VB = 11
    e.salu('s_mul_i32', 's10', 's3', 4 * PITCH)
    e.salu('s_lshr_b32', 's13', 's3', 1)
    e.salu('s_lshl_b32', 's13', 's13', 7)
    e.salu('s_add_u32', 's10', 's10', 's13')
    e.salu('s_add_u32', 's10', 's10', RING)
    e.salu('s_lshl_b32', 's11', 's3', 15)
    e.salu('s_lshl_b32', 's13', 's4', 10)
    e.salu('s_add_u32', 's11', 's11', 's13')
    e.salu('s_lshl_b32', 's12', 's4', 19)
    e.salu('s_lshl_b32', 's13', 's3', 12)
    e.salu('s_add_u32', 's12', 's12', 's13')

    ACC = 64
    AF = 112
    BF = 128

    def wdma(srd, srow, rstride, chunk):
        slot = chunk % 3
        for j in range(4):
            e.salu('s_add_u32', 'm0', 's10', slot * SLOT + j * PITCH)
            e.salu('s_add_u32', 's14', srow, (32 * chunk + j) * rstride)
            e.dma('v6', srd, 's14')

    def gemm_loop(srd, srow, rstride):
        for i in range(16):
            e.wait(vm=4 if i < 15 else 0)
            e.barrier()
            if i + 2 < 16:
                wdma(srd, srow, rstride, i + 2)
            for qt in range(3):
                e.ds_read('ds_read_b128', vr(BF + 4 * qt, 4), vr(VB), XBASE + qt * 16 * PITCH + i * 64)
            for nt in range(4):
                e.ds_read('ds_read_b64_tr_b16', vr(AF + 4 * nt, 2), vr(VA[i % 3]), nt * 32)
                e.ds_read('ds_read_b64_tr_b16', vr(AF + 4 * nt + 2, 2), vr(VA[i % 3]), nt * 32 + 4 * PITCH)
            for nt in range(4):
                e.wait(lgkm=2 * (3 - nt))
                for qt in range(3):
                    d = vr(ACC + (nt * 3 + qt) * 4, 4)
                    e.mfma(d, vr(AF + 4 * nt, 4), vr(BF + 4 * qt, 4), d if i else 0)

    e.salu('s_mul_i32', 's15', 's5', 49152)
    e.salu('s_mul_i32', 's13', 's3', 6 * 1024)
    e.salu('s_add_u32', 's15', 's15', 's13')
    e.salu('s_mul_i32', 's13', 's3', 6 * PITCH)
    for j in range(6):
        e.salu('s_add_u32', 'm0', 's13', XBASE + j * PITCH)
        e.salu('s_add_u32', 's14', 's15', j * 1024)
        e.dma('v6', 's[40:43]', 's14')
    wdma('s[44:47]', 's11', 8192, 0)
    wdma('s[44:47]', 's11', 8192, 1)
    gemm_loop('s[44:47]', 's11', 8192)
    e.valu('v_mul_u32_u24', 'v12', PITCH, 'v2')
    e.valu('v_lshlrev_b32', 'v13', 3, 'v3')
    e.valu('v_add_u32', 'v12', 'v12', 'v13')
    e.salu('s_lshl_b32', 's13', 's3', 7)
    e.salu('s_add_u32', 's13', 's13', QBASE)
    e.valu('v_add_u32', 'v12', 's13', 'v12')
    for nt in range(4):
        for qt in range(3):
            a = ACC + (nt * 3 + qt) * 4
            e.valu('v_cvt_pk_bf16_f32', vr(a), vr(a), vr(a + 1))
            e.valu('v_cvt_pk_bf16_f32', vr(a + 1), vr(a + 2), vr(a + 3))
            e.ds_write('ds_write_b64', 'v12', vr(a, 2), qt * 16 * PITCH + nt * 32)
    VOFF = 12
    VOFF = 240
    for jj in range(4):
        e.valu('v_add_u32', 'v13', 4 * jj, 'v3')
        e.valu('v_and_b32', 'v14', 7, 'v13')
        e.valu('v_lshlrev_b32', 'v14', 1, 'v14')
        e.scmp('s_cmp_eq_u32', 's8', 0)
        e.sop('s_cselect_b64 vcc, -1, 0')
        e.valu('v_cndmask_b32', 'v13', 'v14', 'v13', 'vcc')
        e.valu('v_xor_b32', 'v13', 'v13', 'v2')
        e.valu('v_lshlrev_b32', 'v13', 4, 'v13')
        e.valu('v_lshlrev_b32', 'v14', 8, 'v3')
        e.valu('v_add_u32', vr(VOFF + jj), 'v13', 'v14')
    e.salu('s_lshl_b32', 's15', 's5', 3)
    e.salu('s_add_u32', 's15', 's15', 's4')
    e.salu('s_lshl_b32', 's15', 's15', 17)
    e.salu('s_lshr_b32', 's13', 's3', 2)
    e.salu('s_lshl_b32', 's13', 's13', 16)
    e.salu('s_add_u32', 's15', 's15', 's13')
    e.salu('s_and_b32', 's13', 's3', 1)
    e.salu('s_lshl_b32', 's13', 's13', 13)
    e.salu('s_add_u32', 's15', 's15', 's13')
    e.salu('s_lshl_b32', 's9', 's3', 13)
    def kvdma(it):
        bf = it & 1
        for j in range(8):
            e.salu('s_add_u32', 'm0', 's9', bf * 65536 + j * 1024)
            e.salu('s_add_u32', 's14', 's15', it * 64 * 256 + j * 1024)
            e.dma(vr(VOFF + (j & 3)), 's[52:55]', 's14')
    KA = 244
    VAD = 248
    e.salu('s_lshr_b32', 's13', 's3', 2)
    e.salu('s_lshl_b32', 's13', 's13', 15)
    e.valu('v_xor_b32', 'v13', 'v3', 'v2')
    e.valu('v_lshlrev_b32', 'v13', 4, 'v13')
    e.valu('v_lshlrev_b32', 'v14', 8, 'v2')
    e.valu('v_add_u32', 'v13', 'v13', 'v14')
    e.valu('v_add_u32', vr(KA), 's13', 'v13')
    for c in range(1, 4):
        e.valu('v_xor_b32', vr(KA + c), c << 6, vr(KA))
    e.valu('v_lshlrev_b32', 'v13', 2, 'v3')
    e.valu('v_add_u32', 'v13', 'v13', 'v4')
    e.valu('v_and_b32', 'v14', 7, 'v13')
    e.valu('v_lshlrev_b32', 'v14', 5, 'v14')
    e.valu('v_lshlrev_b32', 'v13', 8, 'v13')
    e.valu('v_add_u32', 'v13', 'v13', 'v14')
    e.valu('v_lshlrev_b32', 'v14', 3, 'v5')
    e.valu('v_add_u32', 'v13', 'v13', 'v14')
    e.salu('s_add_u32', 's13', 's13', 16384)
    e.valu('v_add_u32', vr(VAD), 's13', 'v13')
    for dt in range(1, 8):
        e.valu('v_xor_b32', vr(VAD + dt), dt << 5, vr(VAD))
    e.wait(lgkm=0)
    e.barrier()
    kvdma(0)
    QF = 16
    e.salu('s_and_b32', 's13', 's3', 3)
    e.salu('s_lshl_b32', 's13', 's13', 8)
    e.salu('s_add_u32', 's13', 's13', QBASE)
    e.valu('v_add_u32', 'v13', 's13', vr(VB))
    for qt in range(3):
        for c in range(4):
            e.ds_read('ds_read_b128', vr(QF + (qt * 4 + c) * 4, 4), 'v13', qt * 16 * PITCH + c * 64)
    O = 64
    S = 160
    FR = 208
    M = 224
    Lr = 227
    AL = 230
    T0 = 234
    e.salu('s_mov_b32', 's13', f2u(CSCALE))
    SC = 's13'
    e.wait(lgkm=0)
    for it in range(4):
        e.comment('attention iteration %d' % it)
        e.wait(vm=0)
        e.barrier()
        if it < 3:
            kvdma(it + 1)
        steps = [(kt, c) for kt in range(4) for c in range(4)]
        def kread(s):
            kt, c = steps[s]
            e.ds_read('ds_read_b128', vr(FR + 4 * (s % 4), 4), vr(KA + c), kt * 4096)
        for s in range(3):
            kread(s)
        for s in range(16):
            if s + 3 < 16:
                kread(s + 3)
            e.wait(lgkm=min(3, 15 - s))
            kt, c = steps[s]
            for qt in range(3):
                d = vr(S + (kt * 3 + qt) * 4, 4)
                e.mfma(d, vr(FR + 4 * (s % 4), 4), vr(QF + (qt * 4 + c) * 4, 4), d if c else 0)
        vsteps = [(tp, dt) for tp in range(2) for dt in range(8)]
        def vread(s):
            tp, dt = vsteps[s]
            e.ds_read('ds_read_b64_tr_b16', vr(FR + 4 * (s % 4), 2), vr(VAD + dt), (2 * tp) * 4096)
            e.ds_read('ds_read_b64_tr_b16', vr(FR + 4 * (s % 4) + 2, 2), vr(VAD + dt), (2 * tp + 1) * 4096)
        for s in range(3):
            vread(s)
        for qt in range(3):
            vals = [vr(S + (kt * 3 + qt) * 4 + r) for kt in range(4) for r in range(4)]
            t = vr(T0 + qt)
            e.valu('v_max3_f32', t, vals[0], vals[1], vals[2])
            for k in range(3, 15, 2):
                e.valu('v_max3_f32', t, t, vals[k], vals[k + 1])
            e.valu('v_max_f32', t, t, vals[15])
        for qt in range(3):
            t = vr(T0 + qt); u = vr(T0 + 3 + qt)
            e.valu('v_mov_b32', u, t)
            e.perm('v_permlane32_swap_b32', t, u)
            e.valu('v_max_f32', t, t, u)
            e.valu('v_mov_b32', u, t)
            e.perm('v_permlane16_swap_b32', t, u)
            e.valu('v_max_f32', t, t, u)
        for qt in range(3):
            t = vr(T0 + qt)
            if it > 0:
                e.valu('v_max_f32', t, t, vr(M + qt))
                e.valu('v_sub_f32', vr(AL + qt), vr(M + qt), t)
                e.valu('v_mul_f32', vr(AL + qt), SC, vr(AL + qt))
                e.valu('v_exp_f32', vr(AL + qt), vr(AL + qt))
            e.valu('v_mov_b32', vr(M + qt), t)
            e.valu('v_mul_f32', t, SC, t)
        for qt in range(3):
            t = vr(T0 + qt)
            vals = [vr(S + (kt * 3 + qt) * 4 + r) for kt in range(4) for r in range(4)]
            for v in vals:
                e.valu('v_fma_f32', v, v, SC, '-' + t)
            for v in vals:
                e.valu('v_exp_f32', v, v)
            u = vr(T0 + 3 + qt)
            e.valu('v_add_f32', u, vals[0], vals[1])
            for v in vals[2:]:
                e.valu('v_add_f32', u, u, v)
            if it > 0:
                e.valu('v_fma_f32', vr(Lr + qt), vr(Lr + qt), vr(AL + qt), u)
            else:
                e.valu('v_mov_b32', vr(Lr + qt), u)
            for tp in range(2):
                a = S + ((2 * tp) * 3 + qt) * 4
                b = S + ((2 * tp + 1) * 3 + qt) * 4
                e.valu('v_cvt_pk_bf16_f32', vr(a), vr(a), vr(a + 1))
                e.valu('v_cvt_pk_bf16_f32', vr(a + 1), vr(a + 2), vr(a + 3))
                e.valu('v_cvt_pk_bf16_f32', vr(a + 2), vr(b), vr(b + 1))
                e.valu('v_cvt_pk_bf16_f32', vr(a + 3), vr(b + 2), vr(b + 3))
        if it > 0:
            for dt in range(8):
                for qt in range(3):
                    for r in range(4):
                        o = vr(O + (dt * 3 + qt) * 4 + r)
                        e.valu('v_mul_f32', o, o, vr(AL + qt))
        for s in range(16):
            if s + 3 < 16:
                vread(s + 3)
            e.wait(lgkm=2 * min(3, 15 - s))
            tp, dt = vsteps[s]
            for qt in range(3):
                d = vr(O + (dt * 3 + qt) * 4, 4)
                p = vr(S + ((2 * tp) * 3 + qt) * 4, 4)
                e.mfma(d, vr(FR + 4 * (s % 4), 4), p, d if (it or tp) else 0)
        for c in range(4):
            e.valu('v_xor_b32', vr(KA + c), 0x10000, vr(KA + c))
        for dt in range(8):
            e.valu('v_xor_b32', vr(VAD + dt), 0x10000, vr(VAD + dt))
    for qt in range(3):
        t = vr(Lr + qt); u = vr(T0 + qt)
        e.valu('v_mov_b32', u, t)
        e.perm('v_permlane32_swap_b32', t, u)
        e.valu('v_add_f32', t, t, u)
        e.valu('v_mov_b32', u, t)
        e.perm('v_permlane16_swap_b32', t, u)
        e.valu('v_add_f32', t, t, u)
    e.salu('s_mul_i32', 's14', 's3', 384)
    e.salu('s_add_u32', 's14', 's14', MLBASE)
    e.valu('v_lshlrev_b32', 'v13', 3, 'v2')
    e.valu('v_add_u32', 'v13', 's14', 'v13')
    for qt in range(3):
        e.valu('v_mov_b32', vr(S + 16 + 2 * qt), vr(M + qt))
        e.valu('v_mov_b32', vr(S + 17 + 2 * qt), vr(Lr + qt))
        e.ds_write('ds_write_b64', 'v13', vr(S + 16 + 2 * qt, 2), qt * 128)
    e.wait(lgkm=0)
    e.barrier()
    e.salu('s_xor_b32', 's14', 's3', 4)
    e.salu('s_mul_i32', 's14', 's14', 384)
    e.salu('s_add_u32', 's14', 's14', MLBASE)
    e.valu('v_lshlrev_b32', 'v13', 3, 'v2')
    e.valu('v_add_u32', 'v13', 's14', 'v13')
    PM = S
    for qt in range(3):
        e.ds_read('ds_read_b64', vr(PM + 2 * qt, 2), 'v13', qt * 128)
    e.wait(lgkm=0)
    for qt in range(3):
        pm = vr(PM + 2 * qt); pl = vr(PM + 2 * qt + 1)
        mn = vr(T0); fs = vr(T0 + 1); fo = vr(T0 + 2)
        e.valu('v_max_f32', mn, pm, vr(M + qt))
        e.valu('v_sub_f32', fs, vr(M + qt), mn)
        e.valu('v_mul_f32', fs, SC, fs)
        e.valu('v_exp_f32', fs, fs)
        e.valu('v_sub_f32', fo, pm, mn)
        e.valu('v_mul_f32', fo, SC, fo)
        e.valu('v_exp_f32', fo, fo)
        e.valu('v_mul_f32', mn, vr(Lr + qt), fs)
        e.valu('v_fma_f32', mn, pl, fo, mn)
        e.valu('v_rcp_f32', mn, mn)
        e.valu('v_mul_f32', vr(AL + qt), fs, mn)
    for dt in range(8):
        for qt in range(3):
            for r in range(4):
                o = vr(O + (dt * 3 + qt) * 4 + r)
                e.valu('v_mul_f32', o, o, vr(AL + qt))
    e.salu('s_mul_i32', 's14', 's3', 12288)
    e.salu('s_add_u32', 's14', 's14', XCHG)
    e.valu('v_add_u32', 'v13', 's14', 'v6')
    e.salu('s_xor_b32', 's14', 's3', 4)
    e.salu('s_mul_i32', 's14', 's14', 12288)
    e.salu('s_add_u32', 's14', 's14', XCHG)
    e.valu('v_add_u32', 'v14', 's14', 'v6')
    e.valu('v_mul_u32_u24', 'v15', PITCH, 'v2')
    e.valu('v_lshlrev_b32', 'v12', 3, 'v3')
    e.valu('v_add_u32', 'v15', 'v15', 'v12')
    e.salu('s_and_b32', 's14', 's3', 3)
    e.salu('s_lshl_b32', 's14', 's14', 8)
    e.salu('s_add_u32', 's14', 's14', XBASE)
    e.valu('v_add_u32', 'v15', 's14', 'v15')
    e.scmp('s_cmp_ge_u32', 's3', 4)
    e.sop('s_cbranch_scc1 L_kh1')
    def xchg(send0, keep0):
        for i in range(12):
            e.ds_write('ds_write_b128', 'v13', vr(O + (send0 * 3) * 4 + i * 4, 4), i * 1024)
        e.wait(lgkm=0)
        e.barrier()
        for i in range(12):
            e.ds_read('ds_read_b128', vr(S + i * 4, 4), 'v14', i * 1024)
        e.wait(lgkm=0)
        for dd in range(4):
            for qt in range(3):
                a = O + ((keep0 + dd) * 3 + qt) * 4
                p = S + (dd * 3 + qt) * 4
                for r in range(4):
                    e.valu('v_add_f32', vr(a + r), vr(a + r), vr(p + r))
                e.valu('v_cvt_pk_bf16_f32', vr(a), vr(a), vr(a + 1))
                e.valu('v_cvt_pk_bf16_f32', vr(a + 1), vr(a + 2), vr(a + 3))
                e.ds_write('ds_write_b64', 'v15', vr(a, 2), qt * 16 * PITCH + (keep0 + dd) * 32)
    xchg(4, 0)
    e.sop('s_branch L_khdone')
    e.raw('L_kh1:')
    e.nop(4)
    xchg(0, 4)
    e.raw('L_khdone:')
    e.wait(lgkm=0)
    e.barrier()
    wdma('s[48:51]', 's12', 1024, 0)
    wdma('s[48:51]', 's12', 1024, 1)
    gemm_loop('s[48:51]', 's12', 1024)
    e.valu('v_lshlrev_b32', 'v12', 11, 'v2')
    e.valu('v_lshlrev_b32', 'v13', 4, 'v3')
    e.valu('v_add_u32', 'v12', 'v12', 'v13')
    e.salu('s_lshl_b32', 's14', 's3', 8)
    e.valu('v_add_u32', 'v12', 's14', 'v12')
    e.salu('s_mul_i32', 's15', 's2', 98304)
    for qt in range(3):
        e.salu('s_add_u32', 's14', 's15', qt * 32768)
        for nt in range(4):
            e.bstore('buffer_store_dwordx4', vr(ACC + (nt * 3 + qt) * 4, 4), 'v12', 's[56:59]', 's14', nt * 64)
    e.raw('L_end1:')
    e.raw('    s_endpgm')

    e.hist = []
    e.raw('.globl %s' % K2)
    e.raw('.p2align 8')
    e.raw('.type %s,@function' % K2)
    e.raw('%s:' % K2)
    e.scmp('s_cmp_ge_u32', 's2', 384)
    e.sop('s_cbranch_scc1 L_end2')
    e.smem('s_load_dwordx2 s[4:5], s[0:1], 80', 's[4:5]')
    e.smem('s_load_dwordx2 s[8:9], s[0:1], 96', 's[8:9]')
    e.salu('s_mul_i32', 's12', 's2', 43691)
    e.salu('s_lshr_b32', 's12', 's12', 19)
    e.salu('s_mul_i32', 's13', 's12', 12)
    e.salu('s_sub_u32', 's13', 's2', 's13')
    e.valu('v_lshrrev_b32', 'v1', 6, 'v0')
    e.valu('v_and_b32', 'v2', 63, 'v0')
    e.salu('s_lshl_b32', 's14', 's13', 2)
    e.valu('v_add_u32', 'v1', 's14', 'v1')
    e.valu('v_lshlrev_b32', 'v3', 11, 'v1')
    e.valu('v_lshlrev_b32', 'v4', 5, 'v2')
    e.valu('v_add_u32', 'v3', 'v3', 'v4')
    e.salu('s_mul_i32', 's15', 's12', 8 * 98304)
    e.salu('s_and_b32', 's16', 's12', 15)
    e.salu('s_mul_i32', 's16', 's16', 48 * 2048)
    e.salu('s_lshr_b32', 's17', 's12', 4)
    e.salu('s_lshl_b32', 's17', 's17', 10)
    e.salu('s_add_u32', 's16', 's16', 's17')
    e.valu('v_lshlrev_b32', 'v5', 11, 'v1')
    e.valu('v_lshlrev_b32', 'v4', 4, 'v2')
    e.valu('v_add_u32', 'v5', 'v5', 'v4')
    e.wait(lgkm=0)
    e.salu('s_mov_b32', 's6', 16 * 48 * 1024 * 2)
    e.salu('s_mov_b32', 's7', 0x20000)
    e.salu('s_mov_b32', 's10', 256 * 48 * 512 * 4)
    e.salu('s_mov_b32', 's11', 0x20000)
    for hh in range(8):
        e.salu('s_add_u32', 's18', 's15', hh * 98304)
        e.bload('buffer_load_dwordx4', vr(8 + hh * 8, 4), 'v3', 's[8:11]', 's18', 0)
        e.bload('buffer_load_dwordx4', vr(12 + hh * 8, 4), 'v3', 's[8:11]', 's18', 16)
    for hh in range(1, 8):
        e.wait(vm=2 * (7 - hh))
        for i in range(8):
            e.valu('v_add_f32', vr(8 + i), vr(8 + i), vr(8 + hh * 8 + i))
    for i in range(4):
        e.valu('v_cvt_pk_bf16_f32', vr(8 + i), vr(8 + 2 * i), vr(9 + 2 * i))
    e.bstore('buffer_store_dwordx4', 'v[8:11]', 'v5', 's[4:7]', 's16', 0)
    e.raw('L_end2:')
    e.raw('    s_endpgm')

    e.raw('.section .rodata,"a"')
    for (k, nv) in ((K1, 256), (K2, 80)):
        e.raw('.p2align 6')
        e.raw('.amdhsa_kernel %s' % k)
        e.raw('  .amdhsa_next_free_vgpr %d' % nv)
        e.raw('  .amdhsa_next_free_sgpr 102')
        e.raw('  .amdhsa_accum_offset %d' % nv)
        e.raw('  .amdhsa_group_segment_fixed_size 0')
        e.raw('  .amdhsa_kernarg_size 104')
        e.raw('  .amdhsa_user_sgpr_count 2')
        e.raw('  .amdhsa_user_sgpr_kernarg_segment_ptr 1')
        e.raw('  .amdhsa_system_sgpr_workgroup_id_x 1')
        e.raw('.end_amdhsa_kernel')
    hdr = header()
    hdr.append('; @launch kernel=%s grid=(256,1,1) block=(512,1,1) lds=%d' % (K1, LDS_BYTES))
    hdr.append('; @launch kernel=%s grid=(384,1,1) block=(256,1,1) lds=0' % K2)
    return '\n'.join(hdr) + '\n' + e.text()

if __name__ == '__main__':
    out = sys.argv[1] if len(sys.argv) > 1 else 'cdna_kernels/%s.s' % NAME
    open(out, 'w').write(gen())
    print('written', out)
```

```python
import sys, os, struct
sys.path.insert(0, 'gen')
from emit import E, vr, sr

NAME = "concat_heads__gqa_block_cached__gqa_block_cached__near_ridge"
PITCH = 1056
XBASE = 0
RING = 50688
SLOT = 34304
QBASE = 113152
MLBASE = 153600
XCHG = 50688
LDS_BYTES = 163840
CSCALE = 0.08838834764831845 * 1.4426950408889634
STAMP = int(os.environ.get('STAMP', '0'))
PRIO = int(os.environ.get('PRIO', '1'))
KVMOD = os.environ.get('KVMOD', 'nt')
THR = os.environ.get('THR', '8')

def f2u(f):
    return struct.unpack('<I', struct.pack('<f', f))[0]

def header():
    src = open('cdna_kernels/%s.s.ref' % NAME).read().split('\n')
    out = []
    for l in src:
        if l.startswith(';') and '@launch' not in l:
            out.append(l)
        elif l.startswith(';'):
            continue
        else:
            break
    return out

def gen():
    e = E()
    lab = [0]
    def newlab():
        lab[0] += 1
        return 'L_%d' % lab[0]
    stamp_n = [0]
    def stamp():
        if not STAMP or stamp_n[0] >= 8:
            return
        i = stamp_n[0]; stamp_n[0] += 1
        e.smem('%s s[%d:%d]' % ('s_memrealtime' if os.environ.get('RT') else 's_memtime', 64 + 2 * i, 65 + 2 * i), 's[%d:%d]' % (64 + 2 * i, 65 + 2 * i))
    def stamp_flush():
        if not STAMP:
            return
        e.wait(lgkm=0)
        e.salu('s_lshl_b32', 's14', 's2', 8)
        e.salu('s_lshl_b32', 's15', 's3', 5)
        e.salu('s_add_u32', 's14', 's14', 's15')
        e.salu('s_add_u32', 's14', 's14', 0x2000000)
        e.salu('s_mov_b32', 's58', 0x4000000)
        e.valu('v_mov_b32', 'v12', 0)
        for i in range(stamp_n[0]):
            e.valu('v_mov_b32', vr(16 + i), 's%d' % (64 + 2 * i))
        for i in range(stamp_n[0], 8):
            e.valu('v_mov_b32', vr(16 + i), 's64')
        e.bstore('buffer_store_dwordx4', 'v[16:19]', 'v12', 's[56:59]', 's14', 0)
        e.bstore('buffer_store_dwordx4', 'v[20:23]', 'v12', 's[56:59]', 's14', 16)
    class only:
        def __init__(s, hi):
            s.hi = hi
        def __enter__(s):
            s.l = newlab()
            e.scmp('s_cmp_ge_u32', 's3', 4)
            e.sop('s_cbranch_scc%d %s' % (0 if s.hi else 1, s.l))
        def __exit__(s, *a):
            e.raw(s.l + ':')

    K1 = NAME + "_kernel"
    K2 = "gqa_reduce_kernel"
    e.raw('.amdgcn_target "amdgcn-amd-amdhsa--gfx950"')
    e.raw('.text')
    e.raw('.globl %s' % K1)
    e.raw('.p2align 8')
    e.raw('.type %s,@function' % K1)
    e.raw('%s:' % K1)
    e.scmp('s_cmp_ge_u32', 's2', 256)
    e.sop('s_cbranch_scc1 L_end1')
    if os.environ.get('ENTRY'):
        stamp()
    e.smem('s_load_dwordx16 s[16:31], s[0:1], 0', 's[16:31]')
    e.smem('s_load_dwordx4 s[32:35], s[0:1], 64', 's[32:35]')
    e.smem('s_load_dwordx2 s[38:39], s[0:1], 96', 's[38:39]')
    e.valu('v_lshrrev_b32', 'v2', 6, 'v0')
    e.valu('v_and_b32', 'v1', 63, 'v0')
    e.rfl('s3', 'v2')
    e.salu('s_and_b32', 's4', 's2', 7)
    e.salu('s_lshr_b32', 's5', 's2', 3)
    e.salu('s_and_b32', 's5', 's5', 15)
    e.salu('s_lshr_b32', 's6', 's2', 7)
    e.valu('v_and_b32', 'v2', 15, 'v1')
    e.valu('v_lshrrev_b32', 'v3', 4, 'v1')
    e.valu('v_lshrrev_b32', 'v4', 2, 'v1')
    e.valu('v_and_b32', 'v4', 3, 'v4')
    e.valu('v_and_b32', 'v5', 3, 'v1')
    e.valu('v_lshlrev_b32', 'v6', 4, 'v1')
    e.salu('s_lshr_b32', 's7', 's3', 1)
    e.salu('s_and_b32', 's8', 's7', 1)
    e.wait(lgkm=0)
    e.scmp('s_cmp_eq_u32', 's6', 0)
    for (dst, a, b) in ((40, 16, 26), (60, 18, 28), (62, 20, 30), (44, 22, 32), (48, 24, 34)):
        e.sop('s_cselect_b32 s%d, s%d, s%d' % (dst, a, b))
        e.sop('s_cselect_b32 s%d, s%d, s%d' % (dst + 1, a + 1, b + 1))
    e.salu('s_mov_b32', 's42', 16 * 48 * 512 * 2)
    e.salu('s_mov_b32', 's43', 0x20000)
    e.salu('s_mov_b32', 's46', 512 * 4096 * 2)
    e.salu('s_mov_b32', 's47', 0x20000)
    e.salu('s_mov_b32', 's50', 512 * 4096 * 2)
    e.salu('s_mov_b32', 's51', 0x20000)
    e.scmp('s_cmp_eq_u32', 's8', 0)
    e.sop('s_cselect_b32 s52, s60, s62')
    e.sop('s_cselect_b32 s53, s61, s63')
    e.salu('s_mov_b32', 's54', 16 * 8 * 512 * 128 * 2)
    e.salu('s_mov_b32', 's55', 0x20000)
    e.salu('s_mov_b32', 's56', 's38')
    e.salu('s_mov_b32', 's57', 's39')
    e.salu('s_mov_b32', 's58', 256 * 48 * 512 * 4)
    e.salu('s_mov_b32', 's59', 0x20000)
    stamp()
    e.salu('s_lshl_b32', 's36', 's5', 3)
    e.salu('s_add_u32', 's36', 's36', 's4')
    e.salu('s_lshl_b32', 's36', 's36', 17)
    KVPRE = 128
    e.salu('s_and_b32', 's37', 's3', 1)
    e.salu('s_lshl_b32', 's37', 's37', 16)
    e.salu('s_add_u32', 's37', 's37', 's36')
    def kvpre(lo, hi):
        for i in range(lo, hi):
            e.salu('s_add_u32', 's14', 's37', i * 1024)
            e.bload('buffer_load_dwordx4', vr(KVPRE + 4 * i, 4), 'v6', 's[52:55]', 's14', mods=KVMOD)
    PRE0 = int(os.environ.get('PRE0', '0'))
    with only(True):
        kvpre(0, PRE0)
    e.salu('s_mul_i32', 's10', 's3', 8 * PITCH + 128)
    e.salu('s_add_u32', 's10', 's10', RING)
    e.salu('s_lshl_b32', 's11', 's3', 16)
    e.salu('s_lshl_b32', 's13', 's4', 10)
    e.salu('s_add_u32', 's11', 's11', 's13')
    e.salu('s_lshl_b32', 's12', 's4', 19)
    e.salu('s_lshl_b32', 's13', 's3', 13)
    e.salu('s_add_u32', 's12', 's12', 's13')

    def wdma(srd, srow, rstride, chunk):
        slot = chunk % 3
        e.salu('s_add_u32', 's60', 's5', chunk)
        e.salu('s_and_b32', 's60', 's60', 15)
        e.salu('s_mul_i32', 's60', 's60', 32 * rstride)
        e.salu('s_add_u32', 's60', 's60', srow)
        for j in range(8):
            e.salu('s_add_u32', 'm0', 's10', slot * SLOT + j * PITCH)
            e.salu('s_add_u32', 's14', 's60', j * rstride)
            e.dma('v6', srd, 's14')

    with only(False):
        e.salu('s_mul_i32', 's15', 's5', 49152)
        e.salu('s_mul_i32', 's13', 's3', 12 * 1024)
        e.salu('s_add_u32', 's15', 's15', 's13')
        e.salu('s_mul_i32', 's13', 's3', 12 * PITCH)
        for j in range(12):
            e.salu('s_add_u32', 'm0', 's13', XBASE + j * PITCH)
            e.salu('s_add_u32', 's14', 's15', j * 1024)
            e.dma('v6', 's[40:43]', 's14')
        wdma('s[44:47]', 's11', 8192, 0)
        wdma('s[44:47]', 's11', 8192, 1)

    VA = [8, 9, 10]
    VB = 11
    def gemm_addrs():
        e.valu('v_lshlrev_b32', 'v7', 3, 'v3')
        e.valu('v_add_u32', 'v7', 'v7', 'v4')
        e.valu('v_mul_u32_u24', 'v7', PITCH, 'v7')
        e.valu('v_lshlrev_b32', 'v8', 7, 'v3')
        e.valu('v_add_u32', 'v7', 'v7', 'v8')
        e.valu('v_lshlrev_b32', 'v8', 3, 'v5')
        e.valu('v_add_u32', 'v7', 'v7', 'v8')
        e.salu('s_lshl_b32', 's9', 's3', 7)
        e.salu('s_add_u32', 's9', 's9', RING)
        e.valu('v_add_u32', 'v8', 's9', 'v7')
        e.valu('v_add_u32', 'v9', SLOT, 'v8')
        e.valu('v_add_u32', 'v10', 2 * SLOT, 'v8')
        e.valu('v_mul_u32_u24', 'v11', PITCH, 'v2')
        e.valu('v_lshlrev_b32', 'v12', 4, 'v3')
        e.valu('v_add_u32', 'v11', 'v11', 'v12')
    gemm_addrs()

    ACC = 16
    AF = 64
    BF = 80

    def wdma_parts(srd, srow, rstride, chunk, nrows, mbase):
        slot = chunk % 3
        parts = []
        def head():
            e.salu('s_add_u32', 's60', 's5', chunk)
            e.salu('s_and_b32', 's60', 's60', 15)
            e.salu('s_mul_i32', 's60', 's60', 32 * rstride)
            e.salu('s_add_u32', 's60', 's60', srow)
        for j in range(nrows):
            def f(j=j):
                if j == 0:
                    head()
                e.salu('s_add_u32', 'm0', mbase, slot * SLOT + j * PITCH)
                e.salu('s_add_u32', 's14', 's60', j * rstride)
                e.dma('v6', srd, 's14')
            parts.append(f)
        return parts

    def gemm_loop(srd, srow, rstride, split):
        for i in range(16):
            if split:
                with only(False):
                    e.wait(vm=8 if i < 15 else 0)
            else:
                e.wait(vm=4 if i < 15 else 0)
            e.barrier()
            if os.environ.get('ENTRY') and srd == 's[44:47]' and i in (0, 1):
                stamp()
            e.salu('s_add_u32', 's61', 's5', i)
            e.salu('s_and_b32', 's61', 's61', 15)
            e.salu('s_lshl_b32', 's61', 's61', 6)
            e.valu('v_add_u32', 'v7', 's61', vr(VB))
            for qt in range(3):
                if os.environ.get('NOB') and not split:
                    continue
                e.ds_read('ds_read_b128', vr(BF + 4 * qt, 4), 'v7', XBASE + qt * 16 * PITCH)
            for nt in range(4):
                e.ds_read('ds_read_b64_tr_b16', vr(AF + 4 * nt, 2), vr(VA[i % 3]), nt * 32)
                e.ds_read('ds_read_b64_tr_b16', vr(AF + 4 * nt + 2, 2), vr(VA[i % 3]), nt * 32 + 4 * PITCH)
            parts = []
            if i + 2 < 16:
                parts = wdma_parts(srd, srow, rstride, i + 2, 8 if split else 4, 's10' if split else 's62')
            per = len(parts) // 4
            for nt in range(4):
                if parts:
                    if split:
                        with only(False):
                            for f in parts[nt * per:(nt + 1) * per]:
                                f()
                    else:
                        for f in parts[nt * per:(nt + 1) * per]:
                            f()
                if split and srd == 's[44:47]' and nt in (1, 3):
                    k = 2 * i + (nt >> 1)
                    n0 = PRE0 + (32 - PRE0) * k // 32
                    n1 = PRE0 + (32 - PRE0) * (k + 1) // 32
                    if n1 > n0:
                        with only(True):
                            kvpre(n0, n1)
                e.wait(lgkm=2 * (3 - nt))
                for qt in range(3):
                    if os.environ.get('NOM') and not split:
                        continue
                    d = vr(ACC + (nt * 3 + qt) * 4, 4)
                    e.mfma(d, vr(AF + 4 * nt, 4), vr(BF + 4 * qt, 4), d if i else 0)

    gemm_loop('s[44:47]', 's11', 8192, True)
    stamp()
    e.valu('v_mul_u32_u24', 'v12', PITCH, 'v2')
    e.valu('v_lshlrev_b32', 'v13', 3, 'v3')
    e.valu('v_add_u32', 'v12', 'v12', 'v13')
    e.salu('s_lshl_b32', 's13', 's3', 7)
    e.salu('s_add_u32', 's13', 's13', QBASE)
    e.valu('v_add_u32', 'v12', 's13', 'v12')
    for nt in range(4):
        for qt in range(3):
            a = ACC + (nt * 3 + qt) * 4
            e.valu('v_cvt_pk_bf16_f32', vr(a), vr(a), vr(a + 1))
            e.valu('v_cvt_pk_bf16_f32', vr(a + 1), vr(a + 2), vr(a + 3))
            e.ds_write('ds_write_b64', 'v12', vr(a, 2), qt * 16 * PITCH + nt * 32)
    VOFF = 92
    KA = 96
    VAD = 100
    M = 108
    AL = 111
    ONES = 116
    LT = [2, 8, 120]
    TT = [124, 125, 126, 127, 114, 115]
    for jj in range(4):
        e.valu('v_add_u32', 'v13', 4 * jj, 'v3')
        e.valu('v_and_b32', 'v14', 7, 'v13')
        e.valu('v_lshlrev_b32', 'v14', 1, 'v14')
        e.scmp('s_cmp_eq_u32', 's8', 0)
        e.sop('s_cselect_b64 vcc, -1, 0')
        e.valu('v_cndmask_b32', 'v13', 'v14', 'v13', 'vcc')
        e.valu('v_xor_b32', 'v13', 'v13', 'v2')
        e.valu('v_lshlrev_b32', 'v13', 4, 'v13')
        e.valu('v_lshlrev_b32', 'v14', 8, 'v3')
        e.valu('v_add_u32', vr(VOFF + jj), 'v13', 'v14')
    e.salu('s_lshr_b32', 's13', 's3', 2)
    e.salu('s_lshl_b32', 's13', 's13', 16)
    e.salu('s_add_u32', 's15', 's36', 's13')
    e.salu('s_and_b32', 's13', 's3', 1)
    e.salu('s_lshl_b32', 's13', 's13', 13)
    e.salu('s_add_u32', 's15', 's15', 's13')
    e.salu('s_lshl_b32', 's9', 's3', 13)
    def kvdma1(it, j):
        bf = it & 1
        e.salu('s_add_u32', 'm0', 's9', bf * 65536 + j * 1024)
        e.salu('s_add_u32', 's14', 's15', it * 64 * 256 + j * 1024)
        e.dma(vr(VOFF + (j & 3)), 's[52:55]', 's14', mods=KVMOD)
    def kvdma(it):
        if os.environ.get('KVI', '1') == '1':
            return
        for j in range(8):
            kvdma1(it, j)
    e.salu('s_lshr_b32', 's13', 's3', 2)
    e.salu('s_lshl_b32', 's13', 's13', 15)
    e.valu('v_xor_b32', 'v13', 'v3', 'v2')
    e.valu('v_lshlrev_b32', 'v13', 4, 'v13')
    e.valu('v_lshlrev_b32', 'v14', 8, 'v2')
    e.valu('v_add_u32', 'v13', 'v13', 'v14')
    e.valu('v_add_u32', vr(KA), 's13', 'v13')
    for c in range(1, 4):
        e.valu('v_xor_b32', vr(KA + c), c << 6, vr(KA))
    e.valu('v_lshlrev_b32', 'v13', 2, 'v3')
    e.valu('v_add_u32', 'v13', 'v13', 'v4')
    e.valu('v_and_b32', 'v14', 7, 'v13')
    e.valu('v_lshlrev_b32', 'v14', 5, 'v14')
    e.valu('v_lshlrev_b32', 'v13', 8, 'v13')
    e.valu('v_add_u32', 'v13', 'v13', 'v14')
    e.valu('v_lshlrev_b32', 'v14', 3, 'v5')
    e.valu('v_add_u32', 'v13', 'v13', 'v14')
    e.salu('s_add_u32', 's13', 's13', 16384)
    e.valu('v_add_u32', vr(VAD), 's13', 'v13')
    for dt in range(1, 8):
        e.valu('v_xor_b32', vr(VAD + dt), dt << 5, vr(VAD))
    WA = 64
    e.salu('s_and_b32', 's13', 's3', 1)
    e.salu('s_lshl_b32', 's13', 's13', 1)
    e.salu('s_add_u32', 's13', 's13', 's8')
    e.salu('s_lshl_b32', 's13', 's13', 14)
    for jj in range(4):
        e.valu('v_add_u32', vr(WA + jj), 's13', vr(VOFF + jj))
    e.wait(lgkm=0)
    e.barrier()
    with only(True):
        e.wait(vm=16)
        for i in range(16):
            e.ds_write('ds_write_b128', vr(WA + (i & 3)), vr(KVPRE + 4 * i, 4), i * 1024)
    QF = 16
    e.salu('s_and_b32', 's13', 's3', 3)
    e.salu('s_lshl_b32', 's13', 's13', 8)
    e.salu('s_add_u32', 's13', 's13', QBASE)
    e.valu('v_add_u32', 'v13', 's13', vr(VB))
    for qt in range(3):
        for c in range(4):
            e.ds_read('ds_read_b128', vr(QF + (qt * 4 + c) * 4, 4), 'v13', qt * 16 * PITCH + c * 64)
    e.wait(lgkm=0)
    e.barrier()
    with only(True):
        for jj in range(4):
            e.valu('v_add_u32', vr(WA + jj), 0x10000, vr(WA + jj))
        e.wait(vm=0)
        for i in range(16):
            e.ds_write('ds_write_b128', vr(WA + (i & 3)), vr(KVPRE + 64 + 4 * i, 4), i * 1024)
        e.wait(lgkm=0)
    O = 128
    S = 64
    Sreg = [224 + i for i in range(32)] + [80 + i for i in range(12)] + [12, 13, 14, 15]
    def Sx(kt, qt, r=None, n=1):
        idx = kt * 3 + qt
        base = Sreg[idx * 4]
        if r is None:
            return vr(base, 4)
        return vr(base + r)
    FR = 64
    e.salu('s_mov_b32', 's13', f2u(CSCALE))
    SC = 's13'
    e.salu('s_mov_b32', 's62', f2u(float(THR) / CSCALE))
    for i in range(4):
        e.valu('v_mov_b32', vr(ONES + i), 0x3F803F80)
    if PRIO:
        with only(PRIO == 2):
            e.sop('s_setprio 1')
    for it in range(4):
        e.comment('attention iteration %d' % it)
        if it in (1, 2):
            stamp()
        if it >= 1:
            if it >= 2:
                e.wait(vm=0)
            e.barrier()
            if os.environ.get('SUB') and it == 1:
                stamp()
        steps = [(kt, c) for kt in range(4) for c in range(4)]
        def kread(s):
            kt, c = steps[s]
            e.ds_read('ds_read_b128', vr(FR + 4 * (s % 4), 4), vr(KA + c), kt * 4096)
        for s in range(3):
            kread(s)
        for s in range(16):
            if s + 3 < 16:
                kread(s + 3)
            if 1 <= it < 3 and (s & 1):
                kvdma1(it + 1, s >> 1)
            e.wait(lgkm=min(3, 15 - s))
            kt, c = steps[s]
            for qt in range(3):
                d = Sx(kt, qt)
                e.mfma(d, vr(FR + 4 * (s % 4), 4), vr(QF + (qt * 4 + c) * 4, 4), d if c else 0)
        if os.environ.get('SUB') and it == 1:
            stamp()
        if it == 3:
            e.salu('s_lshl_b32', 's14', 's4', 19)
            e.salu('s_lshl_b32', 's61', 's5', 15)
            e.salu('s_add_u32', 's14', 's14', 's61')
            e.salu('s_lshl_b32', 's61', 's3', 12)
            e.salu('s_add_u32', 's61', 's61', 's14')
            for j in range(4):
                e.salu('s_add_u32', 's14', 's61', j * 1024)
                e.bload('buffer_load_dwordx4', 'v[16:19]', 'v6', 's[48:51]', 's14')
        vsteps = [(tp, dt) for tp in range(2) for dt in range(8)]
        def vread(s):
            tp, dt = vsteps[s]
            e.ds_read('ds_read_b64_tr_b16', vr(FR + 4 * (s % 4), 2), vr(VAD + dt), (2 * tp) * 4096)
            e.ds_read('ds_read_b64_tr_b16', vr(FR + 4 * (s % 4) + 2, 2), vr(VAD + dt), (2 * tp + 1) * 4096)
        for s in range(3):
            vread(s)
        T = [vr(x) for x in TT]
        for qt in range(3):
            vals = [Sx(kt, qt, r) for kt in range(4) for r in range(4)]
            t = T[qt]
            e.valu('v_max3_f32', t, vals[0], vals[1], vals[2])
            for k in range(3, 15, 2):
                e.valu('v_max3_f32', t, t, vals[k], vals[k + 1])
            e.valu('v_max_f32', t, t, vals[15])
        for qt in range(3):
            e.valu('v_mov_b32', T[3 + qt], T[qt])
        for qt in range(3):
            e.perm('v_permlane32_swap_b32', T[qt], T[3 + qt])
        for qt in range(3):
            e.valu('v_max_f32', T[qt], T[qt], T[3 + qt])
        for qt in range(3):
            e.valu('v_mov_b32', T[3 + qt], T[qt])
        for qt in range(3):
            e.perm('v_permlane16_swap_b32', T[qt], T[3 + qt])
        for qt in range(3):
            e.valu('v_max_f32', T[qt], T[qt], T[3 + qt])
        if it == 0:
            for qt in range(3):
                e.valu('v_mov_b32', vr(M + qt), T[qt])
        else:
            for qt in range(3):
                e.valu('v_sub_f32', T[3 + qt], T[qt], vr(M + qt))
            e.valu('v_max3_f32', T[3], T[3], T[4], T[5])
            e.valu('v_cmp_lt_f32', 'vcc', 's62', T[3])
            lskip = newlab()
            e.nop(4)
            e.sop('s_cbranch_vccz %s' % lskip)
            for qt in range(3):
                t = T[qt]
                e.valu('v_max_f32', t, t, vr(M + qt))
                e.valu('v_sub_f32', vr(AL + qt), vr(M + qt), t)
                e.valu('v_mul_f32', vr(AL + qt), SC, vr(AL + qt))
                e.valu('v_exp_f32', vr(AL + qt), vr(AL + qt))
                e.valu('v_mov_b32', vr(M + qt), t)
            for dt in range(8):
                for qt in range(3):
                    for r in range(4):
                        o = vr(O + (dt * 3 + qt) * 4 + r)
                        e.valu('v_mul_f32', o, o, vr(AL + qt))
            for qt in range(3):
                for r in range(4):
                    e.valu('v_mul_f32', vr(LT[qt] + r), vr(LT[qt] + r), vr(AL + qt))
            e.raw(lskip + ':')
            e.nop(2)
        for qt in range(3):
            e.valu('v_mul_f32', T[qt], SC, vr(M + qt))
        for qt in range(3):
            t = T[qt]
            vals = [Sx(kt, qt, r) for kt in range(4) for r in range(4)]
            for v in vals:
                e.valu('v_fma_f32', v, v, SC, '-' + t)
            for v in vals:
                e.valu('v_exp_f32', v, v)
            for tp in range(2):
                a = [Sx(2 * tp, qt, r) for r in range(4)]
                b = [Sx(2 * tp + 1, qt, r) for r in range(4)]
                e.valu('v_cvt_pk_bf16_f32', a[0], a[0], a[1])
                e.valu('v_cvt_pk_bf16_f32', a[1], a[2], a[3])
                e.valu('v_cvt_pk_bf16_f32', a[2], b[0], b[1])
                e.valu('v_cvt_pk_bf16_f32', a[3], b[2], b[3])
        if os.environ.get('SUB') and it == 1:
            stamp()
        for s in range(16):
            if s + 3 < 16:
                vread(s + 3)
            e.wait(lgkm=2 * min(3, 15 - s))
            tp, dt = vsteps[s]
            for qt in range(3):
                d = vr(O + (dt * 3 + qt) * 4, 4)
                e.mfma(d, vr(FR + 4 * (s % 4), 4), Sx(2 * tp, qt), d if (it or tp) else 0)
            if dt == 0:
                for qt in range(3):
                    d = vr(LT[qt], 4)
                    e.mfma(d, vr(ONES, 4), Sx(2 * tp, qt), d if (it or tp) else 0)
        for c in range(4):
            e.valu('v_xor_b32', vr(KA + c), 0x10000, vr(KA + c))
        for dt in range(8):
            e.valu('v_xor_b32', vr(VAD + dt), 0x10000, vr(VAD + dt))
    if PRIO:
        e.sop('s_setprio 0')
    stamp()
    X = 20
    Lr = [FR + 0, FR + 1, FR + 2]
    for qt in range(3):
        e.valu('v_mov_b32', vr(Lr[qt]), vr(LT[qt]))
    e.valu('v_and_b32', 'v1', 63, 'v0')
    e.valu('v_and_b32', 'v2', 15, 'v1')
    e.valu('v_lshrrev_b32', 'v3', 4, 'v1')
    e.valu('v_lshrrev_b32', 'v4', 2, 'v1')
    e.valu('v_and_b32', 'v4', 3, 'v4')
    e.valu('v_and_b32', 'v5', 3, 'v1')
    gemm_addrs()
    e.salu('s_mul_i32', 's14', 's3', 384)
    e.salu('s_add_u32', 's14', 's14', MLBASE)
    e.valu('v_lshlrev_b32', 'v13', 3, 'v2')
    e.valu('v_add_u32', 'v13', 's14', 'v13')
    for qt in range(3):
        e.valu('v_mov_b32', vr(FR + 4 + 2 * qt), vr(M + qt))
        e.valu('v_mov_b32', vr(FR + 5 + 2 * qt), vr(Lr[qt]))
        e.ds_write('ds_write_b64', 'v13', vr(FR + 4 + 2 * qt, 2), qt * 128)
    e.salu('s_xor_b32', 's14', 's3', 4)
    e.salu('s_mul_i32', 's14', 's14', 384)
    e.salu('s_add_u32', 's14', 's14', MLBASE)
    e.valu('v_lshlrev_b32', 'v12', 3, 'v2')
    e.valu('v_add_u32', 'v12', 's14', 'v12')
    e.salu('s_mul_i32', 's14', 's3', 12288)
    e.salu('s_add_u32', 's14', 's14', XCHG)
    e.valu('v_add_u32', 'v13', 's14', 'v6')
    e.salu('s_xor_b32', 's14', 's3', 4)
    e.salu('s_mul_i32', 's14', 's14', 12288)
    e.salu('s_add_u32', 's14', 's14', XCHG)
    e.valu('v_add_u32', 'v14', 's14', 'v6')
    e.valu('v_mul_u32_u24', 'v15', PITCH, 'v2')
    e.valu('v_lshlrev_b32', 'v7', 3, 'v3')
    e.valu('v_add_u32', 'v15', 'v15', 'v7')
    e.salu('s_and_b32', 's14', 's3', 3)
    e.salu('s_lshl_b32', 's14', 's14', 8)
    e.salu('s_add_u32', 's14', 's14', XBASE)
    e.valu('v_add_u32', 'v15', 's14', 'v15')
    e.barrier()
    e.scmp('s_cmp_ge_u32', 's3', 4)
    e.sop('s_cbranch_scc1 L_kh1')
    PM = FR + 10
    def xchg(send0, keep0):
        for i in range(12):
            e.ds_write('ds_write_b128', 'v13', vr(O + (send0 * 3) * 4 + i * 4, 4), i * 1024)
        e.wait(lgkm=0)
        e.barrier()
        for qt in range(3):
            e.ds_read('ds_read_b64', vr(PM + 2 * qt, 2), 'v12', qt * 128)
        XR = [X + 4 * i for i in range(11)] + [92]
        for i in range(12):
            e.ds_read('ds_read_b128', vr(XR[i], 4), 'v14', i * 1024)
        e.wait(lgkm=12)
        T = [vr(x) for x in TT]
        for qt in range(3):
            pm = vr(PM + 2 * qt); pl = vr(PM + 2 * qt + 1)
            mn = T[3]; fs = vr(AL + qt); fo = T[qt]
            e.valu('v_max_f32', mn, pm, vr(M + qt))
            e.valu('v_sub_f32', fs, vr(M + qt), mn)
            e.valu('v_mul_f32', fs, SC, fs)
            e.valu('v_exp_f32', fs, fs)
            e.valu('v_sub_f32', fo, pm, mn)
            e.valu('v_mul_f32', fo, SC, fo)
            e.valu('v_exp_f32', fo, fo)
            e.valu('v_mul_f32', mn, vr(Lr[qt]), fs)
            e.valu('v_fma_f32', mn, pl, fo, mn)
            e.valu('v_rcp_f32', mn, mn)
            e.valu('v_mul_f32', fs, fs, mn)
            e.valu('v_mul_f32', fo, fo, mn)
        e.wait(lgkm=0)
        for dd in range(4):
            for qt in range(3):
                a = O + ((keep0 + dd) * 3 + qt) * 4
                p = XR[dd * 3 + qt]
                for r in range(4):
                    e.valu('v_mul_f32', vr(a + r), vr(a + r), vr(AL + qt))
                    e.valu('v_fma_f32', vr(a + r), vr(p + r), T[qt], vr(a + r))
                e.valu('v_cvt_pk_bf16_f32', vr(a), vr(a), vr(a + 1))
                e.valu('v_cvt_pk_bf16_f32', vr(a + 1), vr(a + 2), vr(a + 3))
                e.ds_write('ds_write_b64', 'v15', vr(a, 2), qt * 16 * PITCH + (keep0 + dd) * 32)
    xchg(4, 0)
    e.sop('s_branch L_khdone')
    e.raw('L_kh1:')
    e.nop(4)
    xchg(0, 4)
    e.raw('L_khdone:')
    e.wait(vm=0, lgkm=0)
    e.barrier()
    stamp()
    e.salu('s_mul_i32', 's62', 's3', 4 * PITCH)
    e.salu('s_lshr_b32', 's13', 's3', 1)
    e.salu('s_lshl_b32', 's13', 's13', 7)
    e.salu('s_add_u32', 's62', 's62', 's13')
    e.salu('s_add_u32', 's62', 's62', RING)
    e.salu('s_lshl_b32', 's63', 's4', 19)
    e.salu('s_lshl_b32', 's13', 's3', 12)
    e.salu('s_add_u32', 's63', 's63', 's13')
    for ch in range(2):
        for f in wdma_parts('s[48:51]', 's63', 1024, ch, 4, 's62'):
            f()
    gemm_loop('s[48:51]', 's63', 1024, False)
    e.valu('v_lshlrev_b32', 'v12', 11, 'v2')
    e.valu('v_lshlrev_b32', 'v13', 4, 'v3')
    e.valu('v_add_u32', 'v12', 'v12', 'v13')
    e.salu('s_lshl_b32', 's14', 's3', 8)
    e.valu('v_add_u32', 'v12', 's14', 'v12')
    e.salu('s_mul_i32', 's15', 's2', 98304)
    for qt in range(3):
        e.salu('s_add_u32', 's14', 's15', qt * 32768)
        for nt in range(4):
            e.bstore('buffer_store_dwordx4', vr(ACC + (nt * 3 + qt) * 4, 4), 'v12', 's[56:59]', 's14', nt * 64)
    stamp()
    e.wait(vm=0)
    stamp()
    stamp_flush()
    e.raw('L_end1:')
    e.raw('    s_endpgm')

    e.hist = []
    e.raw('.globl %s' % K2)
    e.raw('.p2align 8')
    e.raw('.type %s,@function' % K2)
    e.raw('%s:' % K2)
    e.scmp('s_cmp_ge_u32', 's2', 384)
    e.sop('s_cbranch_scc1 L_end2')
    e.smem('s_load_dwordx2 s[4:5], s[0:1], 80', 's[4:5]')
    e.smem('s_load_dwordx2 s[8:9], s[0:1], 96', 's[8:9]')
    e.salu('s_mul_i32', 's12', 's2', 43691)
    e.salu('s_lshr_b32', 's12', 's12', 19)
    e.salu('s_mul_i32', 's13', 's12', 12)
    e.salu('s_sub_u32', 's13', 's2', 's13')
    e.valu('v_lshrrev_b32', 'v1', 6, 'v0')
    e.valu('v_and_b32', 'v2', 63, 'v0')
    e.salu('s_lshl_b32', 's14', 's13', 2)
    e.valu('v_add_u32', 'v1', 's14', 'v1')
    e.valu('v_lshlrev_b32', 'v3', 11, 'v1')
    e.valu('v_lshlrev_b32', 'v4', 5, 'v2')
    e.valu('v_add_u32', 'v3', 'v3', 'v4')
    e.salu('s_mul_i32', 's15', 's12', 8 * 98304)
    e.salu('s_and_b32', 's16', 's12', 15)
    e.salu('s_mul_i32', 's16', 's16', 48 * 2048)
    e.salu('s_lshr_b32', 's17', 's12', 4)
    e.salu('s_lshl_b32', 's17', 's17', 10)
    e.salu('s_add_u32', 's16', 's16', 's17')
    e.valu('v_lshlrev_b32', 'v5', 11, 'v1')
    e.valu('v_lshlrev_b32', 'v4', 4, 'v2')
    e.valu('v_add_u32', 'v5', 'v5', 'v4')
    e.wait(lgkm=0)
    e.salu('s_mov_b32', 's6', 16 * 48 * 1024 * 2)
    e.salu('s_mov_b32', 's7', 0x20000)
    e.salu('s_mov_b32', 's10', 256 * 48 * 512 * 4)
    e.salu('s_mov_b32', 's11', 0x20000)
    for hh in range(8):
        e.salu('s_add_u32', 's18', 's15', hh * 98304)
        e.bload('buffer_load_dwordx4', vr(8 + hh * 8, 4), 'v3', 's[8:11]', 's18', 0)
        e.bload('buffer_load_dwordx4', vr(12 + hh * 8, 4), 'v3', 's[8:11]', 's18', 16)
    for hh in range(1, 8):
        e.wait(vm=2 * (7 - hh))
        for i in range(8):
            e.valu('v_add_f32', vr(8 + i), vr(8 + i), vr(8 + hh * 8 + i))
    for i in range(4):
        e.valu('v_cvt_pk_bf16_f32', vr(8 + i), vr(8 + 2 * i), vr(9 + 2 * i))
    e.bstore('buffer_store_dwordx4', 'v[8:11]', 'v5', 's[4:7]', 's16', 0)
    e.raw('L_end2:')
    e.raw('    s_endpgm')

    e.raw('.section .rodata,"a"')
    for (k, nv) in ((K1, 256), (K2, 80)):
        e.raw('.p2align 6')
        e.raw('.amdhsa_kernel %s' % k)
        e.raw('  .amdhsa_next_free_vgpr %d' % nv)
        e.raw('  .amdhsa_next_free_sgpr 102')
        e.raw('  .amdhsa_accum_offset %d' % nv)
        e.raw('  .amdhsa_group_segment_fixed_size 0')
        e.raw('  .amdhsa_kernarg_size 104')
        e.raw('  .amdhsa_user_sgpr_count 2')
        e.raw('  .amdhsa_user_sgpr_kernarg_segment_ptr 1')
        e.raw('  .amdhsa_system_sgpr_workgroup_id_x 1')
        e.raw('.end_amdhsa_kernel')
    hdr = header()
    hdr.append('; @launch kernel=%s grid=(256,1,1) block=(512,1,1) lds=%d' % (K1, LDS_BYTES))
    hdr.append('; @launch kernel=%s grid=(384,1,1) block=(256,1,1) lds=0' % K2)
    return '\n'.join(hdr) + '\n' + e.text()

if __name__ == '__main__':
    out = sys.argv[1] if len(sys.argv) > 1 else 'cdna_kernels/%s.s' % NAME
    open(out, 'w').write(gen())
    print('written', out)
```

```python
import sys, os, struct
sys.path.insert(0, 'gen')
from emit import E, vr, sr

NAME = "concat_heads__gqa_block_cached__gqa_block_cached__near_ridge"
PITCH = 1056
XBASE = 0
RING = 50688
SLOT = 34304
QBASE = 113152
MLBASE = 153600
XCHG = 50688
LDS_BYTES = 163840
CSCALE = 0.08838834764831845 * 1.4426950408889634
STAMP = int(os.environ.get('STAMP', '0'))
PRIO = int(os.environ.get('PRIO', '1'))
KVMOD = os.environ.get('KVMOD', 'nt')
THR = os.environ.get('THR', '8')

def f2u(f):
    return struct.unpack('<I', struct.pack('<f', f))[0]

def header():
    src = open('cdna_kernels/%s.s.ref' % NAME).read().split('\n')
    out = []
    for l in src:
        if l.startswith(';') and '@launch' not in l:
            out.append(l)
        elif l.startswith(';'):
            continue
        else:
            break
    return out

def gen():
    e = E()
    lab = [0]
    def newlab():
        lab[0] += 1
        return 'L_%d' % lab[0]
    stamp_n = [0]
    def stamp():
        if not STAMP or stamp_n[0] >= 8:
            return
        i = stamp_n[0]; stamp_n[0] += 1
        e.smem('%s s[%d:%d]' % ('s_memrealtime' if os.environ.get('RT') else 's_memtime', 64 + 2 * i, 65 + 2 * i), 's[%d:%d]' % (64 + 2 * i, 65 + 2 * i))
    def stamp_flush():
        if not STAMP:
            return
        e.wait(lgkm=0)
        e.salu('s_lshl_b32', 's14', 's2', 8)
        e.salu('s_lshl_b32', 's15', 's3', 5)
        e.salu('s_add_u32', 's14', 's14', 's15')
        e.salu('s_add_u32', 's14', 's14', 0x2000000)
        e.salu('s_mov_b32', 's58', 0x4000000)
        e.valu('v_mov_b32', 'v12', 0)
        for i in range(stamp_n[0]):
            e.valu('v_mov_b32', vr(16 + i), 's%d' % (64 + 2 * i))
        for i in range(stamp_n[0], 8):
            e.valu('v_mov_b32', vr(16 + i), 's64')
        e.bstore('buffer_store_dwordx4', 'v[16:19]', 'v12', 's[56:59]', 's14', 0)
        e.bstore('buffer_store_dwordx4', 'v[20:23]', 'v12', 's[56:59]', 's14', 16)
    class only:
        def __init__(s, hi):
            s.hi = hi
        def __enter__(s):
            s.l = newlab()
            e.scmp('s_cmp_ge_u32', 's3', 4)
            e.sop('s_cbranch_scc%d %s' % (0 if s.hi else 1, s.l))
        def __exit__(s, *a):
            e.raw(s.l + ':')

    K1 = NAME + "_kernel"
    K2 = "gqa_reduce_kernel"
    e.raw('.amdgcn_target "amdgcn-amd-amdhsa--gfx950"')
    e.raw('.text')
    e.raw('.globl %s' % K1)
    e.raw('.p2align 8')
    e.raw('.type %s,@function' % K1)
    e.raw('%s:' % K1)
    e.scmp('s_cmp_ge_u32', 's2', 256)
    e.sop('s_cbranch_scc1 L_end1')
    if os.environ.get('ENTRY'):
        stamp()
    e.smem('s_load_dwordx16 s[16:31], s[0:1], 0', 's[16:31]')
    e.smem('s_load_dwordx4 s[32:35], s[0:1], 64', 's[32:35]')
    e.smem('s_load_dwordx2 s[38:39], s[0:1], 96', 's[38:39]')
    e.valu('v_lshrrev_b32', 'v2', 6, 'v0')
    e.valu('v_and_b32', 'v1', 63, 'v0')
    e.rfl('s3', 'v2')
    e.salu('s_and_b32', 's4', 's2', 7)
    e.salu('s_lshr_b32', 's5', 's2', 3)
    e.salu('s_and_b32', 's5', 's5', 15)
    e.salu('s_lshr_b32', 's6', 's2', 7)
    e.valu('v_and_b32', 'v2', 15, 'v1')
    e.valu('v_lshrrev_b32', 'v3', 4, 'v1')
    e.valu('v_lshrrev_b32', 'v4', 2, 'v1')
    e.valu('v_and_b32', 'v4', 3, 'v4')
    e.valu('v_and_b32', 'v5', 3, 'v1')
    e.valu('v_lshlrev_b32', 'v6', 4, 'v1')
    e.salu('s_lshr_b32', 's7', 's3', 1)
    e.salu('s_and_b32', 's8', 's7', 1)
    e.wait(lgkm=0)
    e.scmp('s_cmp_eq_u32', 's6', 0)
    for (dst, a, b) in ((40, 16, 26), (60, 18, 28), (62, 20, 30), (44, 22, 32), (48, 24, 34)):
        e.sop('s_cselect_b32 s%d, s%d, s%d' % (dst, a, b))
        e.sop('s_cselect_b32 s%d, s%d, s%d' % (dst + 1, a + 1, b + 1))
    e.salu('s_mov_b32', 's42', 16 * 48 * 512 * 2)
    e.salu('s_mov_b32', 's43', 0x20000)
    e.salu('s_mov_b32', 's46', 512 * 4096 * 2)
    e.salu('s_mov_b32', 's47', 0x20000)
    e.salu('s_mov_b32', 's50', 512 * 4096 * 2)
    e.salu('s_mov_b32', 's51', 0x20000)
    e.scmp('s_cmp_eq_u32', 's8', 0)
    e.sop('s_cselect_b32 s52, s60, s62')
    e.sop('s_cselect_b32 s53, s61, s63')
    e.salu('s_mov_b32', 's54', 16 * 8 * 512 * 128 * 2)
    e.salu('s_mov_b32', 's55', 0x20000)
    e.salu('s_mov_b32', 's56', 's38')
    e.salu('s_mov_b32', 's57', 's39')
    e.salu('s_mov_b32', 's58', 256 * 48 * 512 * 4)
    e.salu('s_mov_b32', 's59', 0x20000)
    stamp()
    e.salu('s_lshl_b32', 's36', 's5', 3)
    e.salu('s_add_u32', 's36', 's36', 's4')
    e.salu('s_lshl_b32', 's36', 's36', 17)
    KVPRE = 128
    e.salu('s_and_b32', 's37', 's3', 1)
    e.salu('s_lshl_b32', 's37', 's37', 16)
    e.salu('s_add_u32', 's37', 's37', 's36')
    def kvpre(lo, hi):
        for i in range(lo, hi):
            e.salu('s_add_u32', 's14', 's37', i * 1024)
            e.bload('buffer_load_dwordx4', vr(KVPRE + 4 * i, 4), 'v6', 's[52:55]', 's14', mods=KVMOD)
    PRE0 = int(os.environ.get('PRE0', '0'))
    with only(True):
        kvpre(0, PRE0)
    e.salu('s_mul_i32', 's10', 's3', 8 * PITCH + 128)
    e.salu('s_add_u32', 's10', 's10', RING)
    e.salu('s_lshl_b32', 's11', 's3', 16)
    e.salu('s_lshl_b32', 's13', 's4', 10)
    e.salu('s_add_u32', 's11', 's11', 's13')
    e.salu('s_lshl_b32', 's12', 's4', 19)
    e.salu('s_lshl_b32', 's13', 's3', 13)
    e.salu('s_add_u32', 's12', 's12', 's13')

    def wdma(srd, srow, rstride, chunk):
        slot = chunk % 3
        e.salu('s_add_u32', 's60', 's5', chunk)
        e.salu('s_and_b32', 's60', 's60', 15)
        e.salu('s_mul_i32', 's60', 's60', 32 * rstride)
        e.salu('s_add_u32', 's60', 's60', srow)
        for j in range(8):
            e.salu('s_add_u32', 'm0', 's10', slot * SLOT + j * PITCH)
            e.salu('s_add_u32', 's14', 's60', j * rstride)
            e.dma('v6', srd, 's14')

    S1 = SLOT + 3072
    def slot1(i):
        return ((i + 1) % 4) * S1
    e.valu('v_sub_u32', 'v100', 0, 'v3')
    e.valu('v_and_b32', 'v100', 3, 'v100')
    e.valu('v_xor_b32', 'v100', 'v100', 'v5')
    e.valu('v_lshlrev_b32', 'v100', 4, 'v100')
    e.valu('v_lshrrev_b32', 'v101', 2, 'v1')
    e.valu('v_lshlrev_b32', 'v101', 10, 'v101')
    e.valu('v_add_u32', 'v100', 'v100', 'v101')
    e.salu('s_min_u32', 's63', 's3', 2)
    e.salu('s_lshl_b32', 's15', 's63', 14)
    e.salu('s_mul_i32', 's13', 's5', 49152)
    e.salu('s_add_u32', 's15', 's15', 's13')
    e.salu('s_lshl_b32', 's63', 's63', 10)
    e.salu('s_mul_i32', 's10', 's3', 8 * PITCH + 128)
    def p1_parts(chunk):
        sl = slot1(chunk)
        parts = []
        def head():
            e.salu('s_add_u32', 's60', 's5', chunk)
            e.salu('s_and_b32', 's60', 's60', 15)
            e.salu('s_lshl_b32', 's61', 's60', 6)
            e.salu('s_mul_i32', 's60', 's60', 32 * 8192)
            e.salu('s_add_u32', 's60', 's60', 's11')
            e.salu('s_add_u32', 'm0', 's63', sl + SLOT)
            e.salu('s_add_u32', 's14', 's15', 's61')
            e.dma('v100', 's[40:43]', 's14')
        for j in range(8):
            def f(j=j):
                if j == 0:
                    head()
                e.salu('s_add_u32', 'm0', 's10', sl + j * PITCH)
                e.salu('s_add_u32', 's14', 's60', j * 8192)
                e.dma('v6', 's[44:47]', 's14')
            parts.append(f)
        return parts
    with only(False):
        for ch in range(3):
            for f in p1_parts(ch):
                f()

    VA = [8, 9, 10]
    VB = 11
    def gemm_addrs():
        e.valu('v_lshlrev_b32', 'v7', 3, 'v3')
        e.valu('v_add_u32', 'v7', 'v7', 'v4')
        e.valu('v_mul_u32_u24', 'v7', PITCH, 'v7')
        e.valu('v_lshlrev_b32', 'v8', 7, 'v3')
        e.valu('v_add_u32', 'v7', 'v7', 'v8')
        e.valu('v_lshlrev_b32', 'v8', 3, 'v5')
        e.valu('v_add_u32', 'v7', 'v7', 'v8')
        e.salu('s_lshl_b32', 's9', 's3', 7)
        e.salu('s_add_u32', 's9', 's9', RING)
        e.valu('v_add_u32', 'v8', 's9', 'v7')
        e.valu('v_add_u32', 'v9', SLOT, 'v8')
        e.valu('v_add_u32', 'v10', 2 * SLOT, 'v8')
        e.valu('v_mul_u32_u24', 'v11', PITCH, 'v2')
        e.valu('v_lshlrev_b32', 'v12', 4, 'v3')
        e.valu('v_add_u32', 'v11', 'v11', 'v12')
    gemm_addrs()

    ACC = 16
    AF = 64
    BF = 80

    def wdma_parts(srd, srow, rstride, chunk, nrows, mbase):
        slot = chunk % 3
        parts = []
        def head():
            e.salu('s_add_u32', 's60', 's5', chunk)
            e.salu('s_and_b32', 's60', 's60', 15)
            e.salu('s_mul_i32', 's60', 's60', 32 * rstride)
            e.salu('s_add_u32', 's60', 's60', srow)
        for j in range(nrows):
            def f(j=j):
                if j == 0:
                    head()
                e.salu('s_add_u32', 'm0', mbase, slot * SLOT + j * PITCH)
                e.salu('s_add_u32', 's14', 's60', j * rstride)
                e.dma('v6', srd, 's14')
            parts.append(f)
        return parts

    def gemm_loop(srd, srow, rstride, split):
        for i in range(16):
            if split:
                with only(False):
                    e.wait(vm=8 if i < 15 else 0)
            else:
                e.wait(vm=4 if i < 15 else 0)
            e.barrier()
            if os.environ.get('ENTRY') and srd == 's[44:47]' and i in (0, 1):
                stamp()
            e.salu('s_add_u32', 's61', 's5', i)
            e.salu('s_and_b32', 's61', 's61', 15)
            e.salu('s_lshl_b32', 's61', 's61', 6)
            e.valu('v_add_u32', 'v7', 's61', vr(VB))
            for qt in range(3):
                if os.environ.get('NOB') and not split:
                    continue
                e.ds_read('ds_read_b128', vr(BF + 4 * qt, 4), 'v7', XBASE + qt * 16 * PITCH)
            for nt in range(4):
                e.ds_read('ds_read_b64_tr_b16', vr(AF + 4 * nt, 2), vr(VA[i % 3]), nt * 32)
                e.ds_read('ds_read_b64_tr_b16', vr(AF + 4 * nt + 2, 2), vr(VA[i % 3]), nt * 32 + 4 * PITCH)
            parts = []
            if i + 2 < 16:
                parts = wdma_parts(srd, srow, rstride, i + 2, 8 if split else 4, 's10' if split else 's62')
            per = len(parts) // 4
            for nt in range(4):
                if parts:
                    if split:
                        with only(False):
                            for f in parts[nt * per:(nt + 1) * per]:
                                f()
                    else:
                        for f in parts[nt * per:(nt + 1) * per]:
                            f()
                if split and srd == 's[44:47]' and nt in (1, 3):
                    k = 2 * i + (nt >> 1)
                    n0 = PRE0 + (32 - PRE0) * k // 32
                    n1 = PRE0 + (32 - PRE0) * (k + 1) // 32
                    if n1 > n0:
                        with only(True):
                            kvpre(n0, n1)
                e.wait(lgkm=2 * (3 - nt))
                for qt in range(3):
                    if os.environ.get('NOM') and not split:
                        continue
                    d = vr(ACC + (nt * 3 + qt) * 4, 4)
                    e.mfma(d, vr(AF + 4 * nt, 4), vr(BF + 4 * qt, 4), d if i else 0)

    for sl in range(4):
        e.valu('v_add_u32', vr(92 + sl), sl * S1 - RING, 'v8')
    e.valu('v_lshrrev_b32', 'v12', 2, 'v2')
    e.valu('v_sub_u32', 'v12', 0, 'v12')
    e.valu('v_and_b32', 'v12', 3, 'v12')
    e.valu('v_xor_b32', 'v12', 'v12', 'v3')
    e.valu('v_lshlrev_b32', 'v12', 4, 'v12')
    e.valu('v_lshlrev_b32', 'v13', 6, 'v2')
    e.valu('v_add_u32', 'v12', 'v12', 'v13')
    for sl in range(4):
        e.valu('v_add_u32', vr(96 + sl), sl * S1 + SLOT, 'v12')
    for i in range(16):
        with only(False):
            e.wait(vm=min(18, 9 * (15 - i)))
        e.barrier()
        if os.environ.get('ENTRY') and i in (0, 1):
            stamp()
        sl = (i + 1) % 4
        for qt in range(3):
            e.ds_read('ds_read_b128', vr(BF + 4 * qt, 4), vr(96 + sl), qt * 1024)
        for nt in range(4):
            e.ds_read('ds_read_b64_tr_b16', vr(AF + 4 * nt, 2), vr(92 + sl), nt * 32)
            e.ds_read('ds_read_b64_tr_b16', vr(AF + 4 * nt + 2, 2), vr(92 + sl), nt * 32 + 4 * PITCH)
        parts = p1_parts(i + 3) if i + 3 < 16 else []
        for nt in range(4):
            if parts:
                with only(False):
                    for f in parts[nt * 2:(nt + 1) * 2]:
                        f()
            if nt in (1, 3):
                k = 2 * i + (nt >> 1)
                n0 = PRE0 + (32 - PRE0) * k // 32
                n1 = PRE0 + (32 - PRE0) * (k + 1) // 32
                if n1 > n0:
                    with only(True):
                        kvpre(n0, n1)
            e.wait(lgkm=2 * (3 - nt))
            for qt in range(3):
                d = vr(ACC + (nt * 3 + qt) * 4, 4)
                e.mfma(d, vr(AF + 4 * nt, 4), vr(BF + 4 * qt, 4), d if i else 0)
    stamp()
    e.valu('v_mul_u32_u24', 'v12', PITCH, 'v2')
    e.valu('v_lshlrev_b32', 'v13', 3, 'v3')
    e.valu('v_add_u32', 'v12', 'v12', 'v13')
    e.salu('s_lshl_b32', 's13', 's3', 7)
    e.salu('s_add_u32', 's13', 's13', QBASE)
    e.valu('v_add_u32', 'v12', 's13', 'v12')
    for nt in range(4):
        for qt in range(3):
            a = ACC + (nt * 3 + qt) * 4
            e.valu('v_cvt_pk_bf16_f32', vr(a), vr(a), vr(a + 1))
            e.valu('v_cvt_pk_bf16_f32', vr(a + 1), vr(a + 2), vr(a + 3))
            e.ds_write('ds_write_b64', 'v12', vr(a, 2), qt * 16 * PITCH + nt * 32)
    VOFF = 92
    KA = 96
    VAD = 100
    M = 108
    AL = 111
    ONES = 116
    LT = [2, 8, 120]
    TT = [124, 125, 126, 127, 114, 115]
    for jj in range(4):
        e.valu('v_add_u32', 'v13', 4 * jj, 'v3')
        e.valu('v_and_b32', 'v14', 7, 'v13')
        e.valu('v_lshlrev_b32', 'v14', 1, 'v14')
        e.scmp('s_cmp_eq_u32', 's8', 0)
        e.sop('s_cselect_b64 vcc, -1, 0')
        e.valu('v_cndmask_b32', 'v13', 'v14', 'v13', 'vcc')
        e.valu('v_xor_b32', 'v13', 'v13', 'v2')
        e.valu('v_lshlrev_b32', 'v13', 4, 'v13')
        e.valu('v_lshlrev_b32', 'v14', 8, 'v3')
        e.valu('v_add_u32', vr(VOFF + jj), 'v13', 'v14')
    e.salu('s_lshr_b32', 's13', 's3', 2)
    e.salu('s_lshl_b32', 's13', 's13', 16)
    e.salu('s_add_u32', 's15', 's36', 's13')
    e.salu('s_and_b32', 's13', 's3', 1)
    e.salu('s_lshl_b32', 's13', 's13', 13)
    e.salu('s_add_u32', 's15', 's15', 's13')
    e.salu('s_lshl_b32', 's9', 's3', 13)
    def kvdma1(it, j):
        bf = it & 1
        e.salu('s_add_u32', 'm0', 's9', bf * 65536 + j * 1024)
        e.salu('s_add_u32', 's14', 's15', it * 64 * 256 + j * 1024)
        e.dma(vr(VOFF + (j & 3)), 's[52:55]', 's14', mods=KVMOD)
    def kvdma(it):
        if os.environ.get('KVI', '1') == '1':
            return
        for j in range(8):
            kvdma1(it, j)
    e.salu('s_lshr_b32', 's13', 's3', 2)
    e.salu('s_lshl_b32', 's13', 's13', 15)
    e.valu('v_xor_b32', 'v13', 'v3', 'v2')
    e.valu('v_lshlrev_b32', 'v13', 4, 'v13')
    e.valu('v_lshlrev_b32', 'v14', 8, 'v2')
    e.valu('v_add_u32', 'v13', 'v13', 'v14')
    e.valu('v_add_u32', vr(KA), 's13', 'v13')
    for c in range(1, 4):
        e.valu('v_xor_b32', vr(KA + c), c << 6, vr(KA))
    e.valu('v_lshlrev_b32', 'v13', 2, 'v3')
    e.valu('v_add_u32', 'v13', 'v13', 'v4')
    e.valu('v_and_b32', 'v14', 7, 'v13')
    e.valu('v_lshlrev_b32', 'v14', 5, 'v14')
    e.valu('v_lshlrev_b32', 'v13', 8, 'v13')
    e.valu('v_add_u32', 'v13', 'v13', 'v14')
    e.valu('v_lshlrev_b32', 'v14', 3, 'v5')
    e.valu('v_add_u32', 'v13', 'v13', 'v14')
    e.salu('s_add_u32', 's13', 's13', 16384)
    e.valu('v_add_u32', vr(VAD), 's13', 'v13')
    for dt in range(1, 8):
        e.valu('v_xor_b32', vr(VAD + dt), dt << 5, vr(VAD))
    WA = 64
    e.salu('s_and_b32', 's13', 's3', 1)
    e.salu('s_lshl_b32', 's13', 's13', 1)
    e.salu('s_add_u32', 's13', 's13', 's8')
    e.salu('s_lshl_b32', 's13', 's13', 14)
    for jj in range(4):
        e.valu('v_add_u32', vr(WA + jj), 's13', vr(VOFF + jj))
    e.wait(lgkm=0)
    e.barrier()
    with only(True):
        e.wait(vm=16)
        for i in range(16):
            e.ds_write('ds_write_b128', vr(WA + (i & 3)), vr(KVPRE + 4 * i, 4), i * 1024)
    QF = 16
    e.salu('s_and_b32', 's13', 's3', 3)
    e.salu('s_lshl_b32', 's13', 's13', 8)
    e.salu('s_add_u32', 's13', 's13', QBASE)
    e.valu('v_add_u32', 'v13', 's13', vr(VB))
    for qt in range(3):
        for c in range(4):
            e.ds_read('ds_read_b128', vr(QF + (qt * 4 + c) * 4, 4), 'v13', qt * 16 * PITCH + c * 64)
    e.wait(lgkm=0)
    e.barrier()
    with only(True):
        for jj in range(4):
            e.valu('v_add_u32', vr(WA + jj), 0x10000, vr(WA + jj))
        e.wait(vm=0)
        for i in range(16):
            e.ds_write('ds_write_b128', vr(WA + (i & 3)), vr(KVPRE + 64 + 4 * i, 4), i * 1024)
        e.wait(lgkm=0)
    O = 128
    S = 64
    Sreg = [224 + i for i in range(32)] + [80 + i for i in range(12)] + [12, 13, 14, 15]
    def Sx(kt, qt, r=None, n=1):
        idx = kt * 3 + qt
        base = Sreg[idx * 4]
        if r is None:
            return vr(base, 4)
        return vr(base + r)
    FR = 64
    e.salu('s_mov_b32', 's13', f2u(CSCALE))
    SC = 's13'
    e.salu('s_mov_b32', 's62', f2u(float(THR) / CSCALE))
    for i in range(4):
        e.valu('v_mov_b32', vr(ONES + i), 0x3F803F80)
    if PRIO:
        with only(PRIO == 2):
            e.sop('s_setprio 1')
    for it in range(4):
        e.comment('attention iteration %d' % it)
        if it in (1, 2):
            stamp()
        if it >= 1:
            if it >= 2:
                e.wait(vm=0)
            e.barrier()
            if os.environ.get('SUB') and it == 1:
                stamp()
        steps = [(kt, c) for kt in range(4) for c in range(4)]
        def kread(s):
            kt, c = steps[s]
            e.ds_read('ds_read_b128', vr(FR + 4 * (s % 4), 4), vr(KA + c), kt * 4096)
        for s in range(3):
            kread(s)
        for s in range(16):
            if s + 3 < 16:
                kread(s + 3)
            if 1 <= it < 3 and (s & 1):
                kvdma1(it + 1, s >> 1)
            e.wait(lgkm=min(3, 15 - s))
            kt, c = steps[s]
            for qt in range(3):
                d = Sx(kt, qt)
                e.mfma(d, vr(FR + 4 * (s % 4), 4), vr(QF + (qt * 4 + c) * 4, 4), d if c else 0)
        if os.environ.get('SUB') and it == 1:
            stamp()
        if it == 3:
            e.salu('s_lshl_b32', 's14', 's4', 19)
            e.salu('s_lshl_b32', 's61', 's5', 15)
            e.salu('s_add_u32', 's14', 's14', 's61')
            e.salu('s_lshl_b32', 's61', 's3', 12)
            e.salu('s_add_u32', 's61', 's61', 's14')
            for j in range(4):
                e.salu('s_add_u32', 's14', 's61', j * 1024)
                e.bload('buffer_load_dwordx4', 'v[16:19]', 'v6', 's[48:51]', 's14')
        vsteps = [(tp, dt) for tp in range(2) for dt in range(8)]
        def vread(s):
            tp, dt = vsteps[s]
            e.ds_read('ds_read_b64_tr_b16', vr(FR + 4 * (s % 4), 2), vr(VAD + dt), (2 * tp) * 4096)
            e.ds_read('ds_read_b64_tr_b16', vr(FR + 4 * (s % 4) + 2, 2), vr(VAD + dt), (2 * tp + 1) * 4096)
        for s in range(3):
            vread(s)
        T = [vr(x) for x in TT]
        for qt in range(3):
            vals = [Sx(kt, qt, r) for kt in range(4) for r in range(4)]
            t = T[qt]
            e.valu('v_max3_f32', t, vals[0], vals[1], vals[2])
            for k in range(3, 15, 2):
                e.valu('v_max3_f32', t, t, vals[k], vals[k + 1])
            e.valu('v_max_f32', t, t, vals[15])
        for qt in range(3):
            e.valu('v_mov_b32', T[3 + qt], T[qt])
        for qt in range(3):
            e.perm('v_permlane32_swap_b32', T[qt], T[3 + qt])
        for qt in range(3):
            e.valu('v_max_f32', T[qt], T[qt], T[3 + qt])
        for qt in range(3):
            e.valu('v_mov_b32', T[3 + qt], T[qt])
        for qt in range(3):
            e.perm('v_permlane16_swap_b32', T[qt], T[3 + qt])
        for qt in range(3):
            e.valu('v_max_f32', T[qt], T[qt], T[3 + qt])
        if it == 0:
            for qt in range(3):
                e.valu('v_mov_b32', vr(M + qt), T[qt])
        else:
            for qt in range(3):
                e.valu('v_sub_f32', T[3 + qt], T[qt], vr(M + qt))
            e.valu('v_max3_f32', T[3], T[3], T[4], T[5])
            e.valu('v_cmp_lt_f32', 'vcc', 's62', T[3])
            lskip = newlab()
            e.nop(4)
            e.sop('s_cbranch_vccz %s' % lskip)
            for qt in range(3):
                t = T[qt]
                e.valu('v_max_f32', t, t, vr(M + qt))
                e.valu('v_sub_f32', vr(AL + qt), vr(M + qt), t)
                e.valu('v_mul_f32', vr(AL + qt), SC, vr(AL + qt))
                e.valu('v_exp_f32', vr(AL + qt), vr(AL + qt))
                e.valu('v_mov_b32', vr(M + qt), t)
            for dt in range(8):
                for qt in range(3):
                    for r in range(4):
                        o = vr(O + (dt * 3 + qt) * 4 + r)
                        e.valu('v_mul_f32', o, o, vr(AL + qt))
            for qt in range(3):
                for r in range(4):
                    e.valu('v_mul_f32', vr(LT[qt] + r), vr(LT[qt] + r), vr(AL + qt))
            e.raw(lskip + ':')
            e.nop(2)
        for qt in range(3):
            e.valu('v_mul_f32', T[qt], SC, vr(M + qt))
        for qt in range(3):
            t = T[qt]
            vals = [Sx(kt, qt, r) for kt in range(4) for r in range(4)]
            for v in vals:
                e.valu('v_fma_f32', v, v, SC, '-' + t)
            for v in vals:
                e.valu('v_exp_f32', v, v)
            for tp in range(2):
                a = [Sx(2 * tp, qt, r) for r in range(4)]
                b = [Sx(2 * tp + 1, qt, r) for r in range(4)]
                e.valu('v_cvt_pk_bf16_f32', a[0], a[0], a[1])
                e.valu('v_cvt_pk_bf16_f32', a[1], a[2], a[3])
                e.valu('v_cvt_pk_bf16_f32', a[2], b[0], b[1])
                e.valu('v_cvt_pk_bf16_f32', a[3], b[2], b[3])
        if os.environ.get('SUB') and it == 1:
            stamp()
        for s in range(16):
            if s + 3 < 16:
                vread(s + 3)
            e.wait(lgkm=2 * min(3, 15 - s))
            tp, dt = vsteps[s]
            for qt in range(3):
                d = vr(O + (dt * 3 + qt) * 4, 4)
                e.mfma(d, vr(FR + 4 * (s % 4), 4), Sx(2 * tp, qt), d if (it or tp) else 0)
            if dt == 0:
                for qt in range(3):
                    d = vr(LT[qt], 4)
                    e.mfma(d, vr(ONES, 4), Sx(2 * tp, qt), d if (it or tp) else 0)
        for c in range(4):
            e.valu('v_xor_b32', vr(KA + c), 0x10000, vr(KA + c))
        for dt in range(8):
            e.valu('v_xor_b32', vr(VAD + dt), 0x10000, vr(VAD + dt))
    if PRIO:
        e.sop('s_setprio 0')
    stamp()
    X = 20
    Lr = [FR + 0, FR + 1, FR + 2]
    for qt in range(3):
        e.valu('v_mov_b32', vr(Lr[qt]), vr(LT[qt]))
    e.valu('v_and_b32', 'v1', 63, 'v0')
    e.valu('v_and_b32', 'v2', 15, 'v1')
    e.valu('v_lshrrev_b32', 'v3', 4, 'v1')
    e.valu('v_lshrrev_b32', 'v4', 2, 'v1')
    e.valu('v_and_b32', 'v4', 3, 'v4')
    e.valu('v_and_b32', 'v5', 3, 'v1')
    gemm_addrs()
    e.salu('s_mul_i32', 's14', 's3', 384)
    e.salu('s_add_u32', 's14', 's14', MLBASE)
    e.valu('v_lshlrev_b32', 'v13', 3, 'v2')
    e.valu('v_add_u32', 'v13', 's14', 'v13')
    for qt in range(3):
        e.valu('v_mov_b32', vr(FR + 4 + 2 * qt), vr(M + qt))
        e.valu('v_mov_b32', vr(FR + 5 + 2 * qt), vr(Lr[qt]))
        e.ds_write('ds_write_b64', 'v13', vr(FR + 4 + 2 * qt, 2), qt * 128)
    e.salu('s_xor_b32', 's14', 's3', 4)
    e.salu('s_mul_i32', 's14', 's14', 384)
    e.salu('s_add_u32', 's14', 's14', MLBASE)
    e.valu('v_lshlrev_b32', 'v12', 3, 'v2')
    e.valu('v_add_u32', 'v12', 's14', 'v12')
    e.salu('s_mul_i32', 's14', 's3', 12288)
    e.salu('s_add_u32', 's14', 's14', XCHG)
    e.valu('v_add_u32', 'v13', 's14', 'v6')
    e.salu('s_xor_b32', 's14', 's3', 4)
    e.salu('s_mul_i32', 's14', 's14', 12288)
    e.salu('s_add_u32', 's14', 's14', XCHG)
    e.valu('v_add_u32', 'v14', 's14', 'v6')
    e.valu('v_mul_u32_u24', 'v15', PITCH, 'v2')
    e.valu('v_lshlrev_b32', 'v7', 3, 'v3')
    e.valu('v_add_u32', 'v15', 'v15', 'v7')
    e.salu('s_and_b32', 's14', 's3', 3)
    e.salu('s_lshl_b32', 's14', 's14', 8)
    e.salu('s_add_u32', 's14', 's14', XBASE)
    e.valu('v_add_u32', 'v15', 's14', 'v15')
    e.barrier()
    e.scmp('s_cmp_ge_u32', 's3', 4)
    e.sop('s_cbranch_scc1 L_kh1')
    PM = FR + 10
    def xchg(send0, keep0):
        for i in range(12):
            e.ds_write('ds_write_b128', 'v13', vr(O + (send0 * 3) * 4 + i * 4, 4), i * 1024)
        e.wait(lgkm=0)
        e.barrier()
        for qt in range(3):
            e.ds_read('ds_read_b64', vr(PM + 2 * qt, 2), 'v12', qt * 128)
        XR = [X + 4 * i for i in range(11)] + [92]
        for i in range(12):
            e.ds_read('ds_read_b128', vr(XR[i], 4), 'v14', i * 1024)
        e.wait(lgkm=12)
        T = [vr(x) for x in TT]
        for qt in range(3):
            pm = vr(PM + 2 * qt); pl = vr(PM + 2 * qt + 1)
            mn = T[3]; fs = vr(AL + qt); fo = T[qt]
            e.valu('v_max_f32', mn, pm, vr(M + qt))
            e.valu('v_sub_f32', fs, vr(M + qt), mn)
            e.valu('v_mul_f32', fs, SC, fs)
            e.valu('v_exp_f32', fs, fs)
            e.valu('v_sub_f32', fo, pm, mn)
            e.valu('v_mul_f32', fo, SC, fo)
            e.valu('v_exp_f32', fo, fo)
            e.valu('v_mul_f32', mn, vr(Lr[qt]), fs)
            e.valu('v_fma_f32', mn, pl, fo, mn)
            e.valu('v_rcp_f32', mn, mn)
            e.valu('v_mul_f32', fs, fs, mn)
            e.valu('v_mul_f32', fo, fo, mn)
        e.wait(lgkm=0)
        for dd in range(4):
            for qt in range(3):
                a = O + ((keep0 + dd) * 3 + qt) * 4
                p = XR[dd * 3 + qt]
                for r in range(4):
                    e.valu('v_mul_f32', vr(a + r), vr(a + r), vr(AL + qt))
                    e.valu('v_fma_f32', vr(a + r), vr(p + r), T[qt], vr(a + r))
                e.valu('v_cvt_pk_bf16_f32', vr(a), vr(a), vr(a + 1))
                e.valu('v_cvt_pk_bf16_f32', vr(a + 1), vr(a + 2), vr(a + 3))
                e.ds_write('ds_write_b64', 'v15', vr(a, 2), qt * 16 * PITCH + (keep0 + dd) * 32)
    xchg(4, 0)
    e.sop('s_branch L_khdone')
    e.raw('L_kh1:')
    e.nop(4)
    xchg(0, 4)
    e.raw('L_khdone:')
    e.wait(vm=0, lgkm=0)
    e.barrier()
    stamp()
    e.salu('s_mul_i32', 's62', 's3', 4 * PITCH)
    e.salu('s_lshr_b32', 's13', 's3', 1)
    e.salu('s_lshl_b32', 's13', 's13', 7)
    e.salu('s_add_u32', 's62', 's62', 's13')
    e.salu('s_add_u32', 's62', 's62', RING)
    e.salu('s_lshl_b32', 's63', 's4', 19)
    e.salu('s_lshl_b32', 's13', 's3', 12)
    e.salu('s_add_u32', 's63', 's63', 's13')
    for ch in range(2):
        for f in wdma_parts('s[48:51]', 's63', 1024, ch, 4, 's62'):
            f()
    gemm_loop('s[48:51]', 's63', 1024, False)
    e.salu('s_mul_i32', 's15', 's2', 49152)
    e.salu('s_mul_i32', 's14', 's3', 6144)
    e.salu('s_add_u32', 's15', 's15', 's14')
    for qt in range(3):
        for np_ in range(2):
            a0 = ACC + ((2 * np_) * 3 + qt) * 4
            a1 = ACC + ((2 * np_ + 1) * 3 + qt) * 4
            d = 64 + (qt * 2 + np_) * 4
            e.valu('v_cvt_pk_bf16_f32', vr(d), vr(a0), vr(a0 + 1))
            e.valu('v_cvt_pk_bf16_f32', vr(d + 1), vr(a0 + 2), vr(a0 + 3))
            e.valu('v_cvt_pk_bf16_f32', vr(d + 2), vr(a1), vr(a1 + 1))
            e.valu('v_cvt_pk_bf16_f32', vr(d + 3), vr(a1 + 2), vr(a1 + 3))
            e.bstore('buffer_store_dwordx4', vr(d, 4), 'v6', 's[56:59]', 's15', (qt * 2 + np_) * 1024 if (qt * 2 + np_) < 4 else 0) if (qt * 2 + np_) < 4 else None
            if (qt * 2 + np_) >= 4:
                e.salu('s_add_u32', 's14', 's15', (qt * 2 + np_) * 1024)
                e.bstore('buffer_store_dwordx4', vr(d, 4), 'v6', 's[56:59]', 's14', 0)
    stamp()
    e.wait(vm=0)
    stamp()
    stamp_flush()
    e.raw('L_end1:')
    e.raw('    s_endpgm')

    e.hist = []
    e.raw('.globl %s' % K2)
    e.raw('.p2align 8')
    e.raw('.type %s,@function' % K2)
    e.raw('%s:' % K2)
    e.scmp('s_cmp_ge_u32', 's2', 384)
    e.sop('s_cbranch_scc1 L_end2')
    e.smem('s_load_dwordx2 s[4:5], s[0:1], 80', 's[4:5]')
    e.smem('s_load_dwordx2 s[8:9], s[0:1], 96', 's[8:9]')
    e.valu('v_lshrrev_b32', 'v1', 6, 'v0')
    e.valu('v_and_b32', 'v2', 63, 'v0')
    e.rfl('s3', 'v1')
    e.salu('s_mul_i32', 's12', 's2', 43691)
    e.salu('s_lshr_b32', 's12', 's12', 19)
    e.salu('s_mul_i32', 's13', 's12', 12)
    e.salu('s_sub_u32', 's13', 's2', 's13')
    e.salu('s_lshl_b32', 's13', 's13', 2)
    e.salu('s_add_u32', 's13', 's13', 's3')
    e.salu('s_mul_i32', 's14', 's13', 43)
    e.salu('s_lshr_b32', 's14', 's14', 8)
    e.salu('s_mul_i32', 's15', 's14', 6)
    e.salu('s_sub_u32', 's15', 's13', 's15')
    e.valu('v_lshlrev_b32', 'v3', 4, 'v2')
    e.salu('s_mul_i32', 's16', 's12', 8 * 49152)
    e.salu('s_lshl_b32', 's17', 's13', 10)
    e.salu('s_add_u32', 's16', 's16', 's17')
    e.salu('s_and_b32', 's18', 's12', 15)
    e.salu('s_mul_i32', 's18', 's18', 48 * 2048)
    e.salu('s_lshr_b32', 's19', 's12', 4)
    e.salu('s_lshl_b32', 's19', 's19', 10)
    e.salu('s_add_u32', 's18', 's18', 's19')
    e.salu('s_lshl_b32', 's19', 's14', 7)
    e.salu('s_add_u32', 's18', 's18', 's19')
    e.salu('s_lshr_b32', 's19', 's15', 1)
    e.salu('s_lshl_b32', 's19', 's19', 15)
    e.salu('s_add_u32', 's18', 's18', 's19')
    e.salu('s_and_b32', 's19', 's15', 1)
    e.salu('s_lshl_b32', 's19', 's19', 6)
    e.salu('s_add_u32', 's18', 's18', 's19')
    e.valu('v_and_b32', 'v4', 15, 'v2')
    e.valu('v_lshlrev_b32', 'v4', 11, 'v4')
    e.valu('v_lshrrev_b32', 'v5', 4, 'v2')
    e.valu('v_lshlrev_b32', 'v5', 3, 'v5')
    e.valu('v_add_u32', 'v4', 'v4', 'v5')
    e.wait(lgkm=0)
    e.salu('s_mov_b32', 's6', 16 * 48 * 1024 * 2)
    e.salu('s_mov_b32', 's7', 0x20000)
    e.salu('s_mov_b32', 's10', 256 * 49152)
    e.salu('s_mov_b32', 's11', 0x20000)
    for hh in range(8):
        e.salu('s_add_u32', 's20', 's16', hh * 49152)
        e.bload('buffer_load_dwordx4', vr(8 + hh * 4, 4), 'v3', 's[8:11]', 's20', 0)
    for hh in range(8):
        e.wait(vm=7 - hh)
        for i in range(4):
            src = vr(8 + hh * 4 + i)
            if hh == 0:
                e.valu('v_lshlrev_b32', vr(40 + 2 * i), 16, src)
                e.valu('v_and_b32', vr(41 + 2 * i), 0xffff0000, src)
            else:
                e.valu('v_lshlrev_b32', 'v48', 16, src)
                e.valu('v_and_b32', 'v49', 0xffff0000, src)
                e.valu('v_add_f32', vr(40 + 2 * i), vr(40 + 2 * i), 'v48')
                e.valu('v_add_f32', vr(41 + 2 * i), vr(41 + 2 * i), 'v49')
    for i in range(4):
        e.valu('v_cvt_pk_bf16_f32', vr(50 + i), vr(40 + 2 * i), vr(41 + 2 * i))
    e.bstore('buffer_store_dwordx2', 'v[50:51]', 'v4', 's[4:7]', 's18', 0)
    e.bstore('buffer_store_dwordx2', 'v[52:53]', 'v4', 's[4:7]', 's18', 32)
    e.raw('L_end2:')
    e.raw('    s_endpgm')

    e.raw('.section .rodata,"a"')
    for (k, nv) in ((K1, 256), (K2, 56)):
        e.raw('.p2align 6')
        e.raw('.amdhsa_kernel %s' % k)
        e.raw('  .amdhsa_next_free_vgpr %d' % nv)
        e.raw('  .amdhsa_next_free_sgpr 102')
        e.raw('  .amdhsa_accum_offset %d' % nv)
        e.raw('  .amdhsa_group_segment_fixed_size 0')
        e.raw('  .amdhsa_kernarg_size 104')
        e.raw('  .amdhsa_user_sgpr_count 2')
        e.raw('  .amdhsa_user_sgpr_kernarg_segment_ptr 1')
        e.raw('  .amdhsa_system_sgpr_workgroup_id_x 1')
        e.raw('.end_amdhsa_kernel')
    hdr = header()
    hdr.append('; @launch kernel=%s grid=(256,1,1) block=(512,1,1) lds=%d' % (K1, LDS_BYTES))
    hdr.append('; @launch kernel=%s grid=(384,1,1) block=(256,1,1) lds=0' % K2)
    return '\n'.join(hdr) + '\n' + e.text()

if __name__ == '__main__':
    out = sys.argv[1] if len(sys.argv) > 1 else 'cdna_kernels/%s.s' % NAME
    open(out, 'w').write(gen())
    print('written', out)
```

```python
import sys, os, struct
sys.path.insert(0, 'gen')
from emit import E, vr, sr

NAME = "concat_heads__gqa_block_cached__gqa_block_cached__near_ridge"
PITCH = 1056
XBASE = 0
RING = 50688
SLOT = 34304
QBASE = 113152
MLBASE = 153600
XCHG = 50688
LDS_BYTES = 163840
CSCALE = 0.08838834764831845 * 1.4426950408889634
STAMP = int(os.environ.get('STAMP', '0'))
PRIO = int(os.environ.get('PRIO', '1'))
KVMOD = os.environ.get('KVMOD', 'nt')
THR = os.environ.get('THR', '8')

def f2u(f):
    return struct.unpack('<I', struct.pack('<f', f))[0]

def header():
    src = open('cdna_kernels/%s.s.ref' % NAME).read().split('\n')
    out = []
    for l in src:
        if l.startswith(';') and '@launch' not in l:
            out.append(l)
        elif l.startswith(';'):
            continue
        else:
            break
    return out

def gen():
    e = E()
    lab = [0]
    def newlab():
        lab[0] += 1
        return 'L_%d' % lab[0]
    stamp_n = [0]
    def stamp():
        if not STAMP or stamp_n[0] >= 8:
            return
        i = stamp_n[0]; stamp_n[0] += 1
        e.smem('%s s[%d:%d]' % ('s_memrealtime' if os.environ.get('RT') else 's_memtime', 64 + 2 * i, 65 + 2 * i), 's[%d:%d]' % (64 + 2 * i, 65 + 2 * i))
    def stamp_flush():
        if not STAMP:
            return
        e.wait(lgkm=0)
        e.salu('s_lshl_b32', 's14', 's2', 8)
        e.salu('s_lshl_b32', 's15', 's3', 5)
        e.salu('s_add_u32', 's14', 's14', 's15')
        e.salu('s_add_u32', 's14', 's14', 0x2000000)
        e.salu('s_mov_b32', 's58', 0x4000000)
        e.valu('v_mov_b32', 'v12', 0)
        for i in range(stamp_n[0]):
            e.valu('v_mov_b32', vr(16 + i), 's%d' % (64 + 2 * i))
        for i in range(stamp_n[0], 8):
            e.valu('v_mov_b32', vr(16 + i), 's64')
        e.bstore('buffer_store_dwordx4', 'v[16:19]', 'v12', 's[56:59]', 's14', 0)
        e.bstore('buffer_store_dwordx4', 'v[20:23]', 'v12', 's[56:59]', 's14', 16)
    class only:
        def __init__(s, hi):
            s.hi = hi
        def __enter__(s):
            s.l = newlab()
            e.scmp('s_cmp_ge_u32', 's3', 4)
            e.sop('s_cbranch_scc%d %s' % (0 if s.hi else 1, s.l))
        def __exit__(s, *a):
            e.raw(s.l + ':')

    K1 = NAME + "_kernel"
    K2 = "gqa_reduce_kernel"
    e.raw('.amdgcn_target "amdgcn-amd-amdhsa--gfx950"')
    e.raw('.text')
    e.raw('.globl %s' % K1)
    e.raw('.p2align 8')
    e.raw('.type %s,@function' % K1)
    e.raw('%s:' % K1)
    e.scmp('s_cmp_ge_u32', 's2', 256)
    e.sop('s_cbranch_scc1 L_end1')
    if os.environ.get('ENTRY'):
        stamp()
    e.smem('s_load_dwordx16 s[16:31], s[0:1], 0', 's[16:31]')
    e.smem('s_load_dwordx4 s[32:35], s[0:1], 64', 's[32:35]')
    e.smem('s_load_dwordx2 s[38:39], s[0:1], 96', 's[38:39]')
    e.valu('v_lshrrev_b32', 'v2', 6, 'v0')
    e.valu('v_and_b32', 'v1', 63, 'v0')
    e.rfl('s3', 'v2')
    e.salu('s_and_b32', 's4', 's2', 7)
    e.salu('s_lshr_b32', 's5', 's2', 3)
    e.salu('s_and_b32', 's5', 's5', 15)
    e.salu('s_lshr_b32', 's6', 's2', 7)
    e.valu('v_and_b32', 'v2', 15, 'v1')
    e.valu('v_lshrrev_b32', 'v3', 4, 'v1')
    e.valu('v_lshrrev_b32', 'v4', 2, 'v1')
    e.valu('v_and_b32', 'v4', 3, 'v4')
    e.valu('v_and_b32', 'v5', 3, 'v1')
    e.valu('v_lshlrev_b32', 'v6', 4, 'v1')
    e.salu('s_lshr_b32', 's7', 's3', 1)
    e.salu('s_and_b32', 's8', 's7', 1)
    e.wait(lgkm=0)
    e.scmp('s_cmp_eq_u32', 's6', 0)
    for (dst, a, b) in ((40, 16, 26), (60, 18, 28), (62, 20, 30), (44, 22, 32), (48, 24, 34)):
        e.sop('s_cselect_b32 s%d, s%d, s%d' % (dst, a, b))
        e.sop('s_cselect_b32 s%d, s%d, s%d' % (dst + 1, a + 1, b + 1))
    e.salu('s_mov_b32', 's42', 16 * 48 * 512 * 2)
    e.salu('s_mov_b32', 's43', 0x20000)
    e.salu('s_mov_b32', 's46', 512 * 4096 * 2)
    e.salu('s_mov_b32', 's47', 0x20000)
    e.salu('s_mov_b32', 's50', 512 * 4096 * 2)
    e.salu('s_mov_b32', 's51', 0x20000)
    e.scmp('s_cmp_eq_u32', 's8', 0)
    e.sop('s_cselect_b32 s52, s60, s62')
    e.sop('s_cselect_b32 s53, s61, s63')
    e.salu('s_mov_b32', 's54', 16 * 8 * 512 * 128 * 2)
    e.salu('s_mov_b32', 's55', 0x20000)
    e.salu('s_mov_b32', 's56', 's38')
    e.salu('s_mov_b32', 's57', 's39')
    e.salu('s_mov_b32', 's58', 256 * 48 * 512 * 4)
    e.salu('s_mov_b32', 's59', 0x20000)
    stamp()
    e.salu('s_lshl_b32', 's36', 's5', 3)
    e.salu('s_add_u32', 's36', 's36', 's4')
    e.salu('s_lshl_b32', 's36', 's36', 17)
    KVPRE = 128
    e.salu('s_and_b32', 's37', 's3', 1)
    e.salu('s_lshl_b32', 's37', 's37', 16)
    e.salu('s_add_u32', 's37', 's37', 's36')
    def kvpre(lo, hi):
        for i in range(lo, hi):
            e.salu('s_add_u32', 's14', 's37', i * 1024)
            e.bload('buffer_load_dwordx4', vr(KVPRE + 4 * i, 4), 'v6', 's[52:55]', 's14', mods=KVMOD)
    PRE0 = int(os.environ.get('PRE0', '0'))
    NPRE = int(os.environ.get('NPRE', '16'))
    with only(True):
        kvpre(0, PRE0)
    e.salu('s_mul_i32', 's10', 's3', 8 * PITCH + 128)
    e.salu('s_add_u32', 's10', 's10', RING)
    e.salu('s_lshl_b32', 's11', 's3', 16)
    e.salu('s_lshl_b32', 's13', 's4', 10)
    e.salu('s_add_u32', 's11', 's11', 's13')
    e.salu('s_lshl_b32', 's12', 's4', 19)
    e.salu('s_lshl_b32', 's13', 's3', 13)
    e.salu('s_add_u32', 's12', 's12', 's13')

    def wdma(srd, srow, rstride, chunk):
        slot = chunk % 3
        e.salu('s_add_u32', 's60', 's5', chunk)
        e.salu('s_and_b32', 's60', 's60', 15)
        e.salu('s_mul_i32', 's60', 's60', 32 * rstride)
        e.salu('s_add_u32', 's60', 's60', srow)
        for j in range(8):
            e.salu('s_add_u32', 'm0', 's10', slot * SLOT + j * PITCH)
            e.salu('s_add_u32', 's14', 's60', j * rstride)
            e.dma('v6', srd, 's14')

    S1 = SLOT + 3072
    def slot1(i):
        return ((i + 1) % 4) * S1
    e.valu('v_sub_u32', 'v100', 0, 'v3')
    e.valu('v_and_b32', 'v100', 3, 'v100')
    e.valu('v_xor_b32', 'v100', 'v100', 'v5')
    e.valu('v_lshlrev_b32', 'v100', 4, 'v100')
    e.valu('v_lshrrev_b32', 'v101', 2, 'v1')
    e.valu('v_lshlrev_b32', 'v101', 10, 'v101')
    e.valu('v_add_u32', 'v100', 'v100', 'v101')
    e.salu('s_min_u32', 's63', 's3', 2)
    e.salu('s_lshl_b32', 's15', 's63', 14)
    e.salu('s_mul_i32', 's13', 's5', 49152)
    e.salu('s_add_u32', 's15', 's15', 's13')
    e.salu('s_lshl_b32', 's63', 's63', 10)
    e.salu('s_mul_i32', 's10', 's3', 8 * PITCH + 128)
    def p1_parts(chunk):
        sl = slot1(chunk)
        parts = []
        def head():
            e.salu('s_add_u32', 's60', 's5', chunk)
            e.salu('s_and_b32', 's60', 's60', 15)
            e.salu('s_lshl_b32', 's61', 's60', 6)
            e.salu('s_mul_i32', 's60', 's60', 32 * 8192)
            e.salu('s_add_u32', 's60', 's60', 's11')
            e.salu('s_add_u32', 'm0', 's63', sl + SLOT)
            e.salu('s_add_u32', 's14', 's15', 's61')
            e.dma('v100', 's[40:43]', 's14')
        for j in range(8):
            def f(j=j):
                if j == 0:
                    head()
                e.salu('s_add_u32', 'm0', 's10', sl + j * PITCH)
                e.salu('s_add_u32', 's14', 's60', j * 8192)
                e.dma('v6', 's[44:47]', 's14')
            parts.append(f)
        return parts
    with only(False):
        for ch in range(3):
            for f in p1_parts(ch):
                f()

    VA = [8, 9, 10]
    VB = 11
    def gemm_addrs():
        e.valu('v_lshlrev_b32', 'v7', 3, 'v3')
        e.valu('v_add_u32', 'v7', 'v7', 'v4')
        e.valu('v_mul_u32_u24', 'v7', PITCH, 'v7')
        e.valu('v_lshlrev_b32', 'v8', 7, 'v3')
        e.valu('v_add_u32', 'v7', 'v7', 'v8')
        e.valu('v_lshlrev_b32', 'v8', 3, 'v5')
        e.valu('v_add_u32', 'v7', 'v7', 'v8')
        e.salu('s_lshl_b32', 's9', 's3', 7)
        e.salu('s_add_u32', 's9', 's9', RING)
        e.valu('v_add_u32', 'v8', 's9', 'v7')
        e.valu('v_add_u32', 'v9', SLOT, 'v8')
        e.valu('v_add_u32', 'v10', 2 * SLOT, 'v8')
        e.valu('v_mul_u32_u24', 'v11', PITCH, 'v2')
        e.valu('v_lshlrev_b32', 'v12', 4, 'v3')
        e.valu('v_add_u32', 'v11', 'v11', 'v12')
    gemm_addrs()

    ACC = 16
    AF = 64
    BF = 80

    def wdma_parts(srd, srow, rstride, chunk, nrows, mbase):
        slot = chunk % 3
        parts = []
        def head():
            e.salu('s_add_u32', 's60', 's5', chunk)
            e.salu('s_and_b32', 's60', 's60', 15)
            e.salu('s_mul_i32', 's60', 's60', 32 * rstride)
            e.salu('s_add_u32', 's60', 's60', srow)
        for j in range(nrows):
            def f(j=j):
                if j == 0:
                    head()
                e.salu('s_add_u32', 'm0', mbase, slot * SLOT + j * PITCH)
                e.salu('s_add_u32', 's14', 's60', j * rstride)
                e.dma('v6', srd, 's14')
            parts.append(f)
        return parts

    def gemm_loop(srd, srow, rstride, split):
        for i in range(16):
            if split:
                with only(False):
                    e.wait(vm=8 if i < 15 else 0)
            else:
                e.wait(vm=4 if i < 15 else 0)
            e.barrier()
            if os.environ.get('ENTRY') and srd == 's[44:47]' and i in (0, 1):
                stamp()
            e.salu('s_add_u32', 's61', 's5', i)
            e.salu('s_and_b32', 's61', 's61', 15)
            e.salu('s_lshl_b32', 's61', 's61', 6)
            e.valu('v_add_u32', 'v7', 's61', vr(VB))
            for qt in range(3):
                if os.environ.get('NOB') and not split:
                    continue
                e.ds_read('ds_read_b128', vr(BF + 4 * qt, 4), 'v7', XBASE + qt * 16 * PITCH)
            for nt in range(4):
                e.ds_read('ds_read_b64_tr_b16', vr(AF + 4 * nt, 2), vr(VA[i % 3]), nt * 32)
                e.ds_read('ds_read_b64_tr_b16', vr(AF + 4 * nt + 2, 2), vr(VA[i % 3]), nt * 32 + 4 * PITCH)
            parts = []
            if i + 2 < 16:
                parts = wdma_parts(srd, srow, rstride, i + 2, 8 if split else 4, 's10' if split else 's62')
            per = len(parts) // 4
            for nt in range(4):
                if parts:
                    if split:
                        with only(False):
                            for f in parts[nt * per:(nt + 1) * per]:
                                f()
                    else:
                        for f in parts[nt * per:(nt + 1) * per]:
                            f()
                if split and srd == 's[44:47]' and nt in (1, 3):
                    k = 2 * i + (nt >> 1)
                    n0 = PRE0 + (32 - PRE0) * k // 32
                    n1 = PRE0 + (32 - PRE0) * (k + 1) // 32
                    if n1 > n0:
                        with only(True):
                            kvpre(n0, n1)
                e.wait(lgkm=2 * (3 - nt))
                for qt in range(3):
                    if os.environ.get('NOM') and not split:
                        continue
                    d = vr(ACC + (nt * 3 + qt) * 4, 4)
                    e.mfma(d, vr(AF + 4 * nt, 4), vr(BF + 4 * qt, 4), d if i else 0)

    for sl in range(4):
        e.valu('v_add_u32', vr(92 + sl), sl * S1 - RING, 'v8')
    e.valu('v_lshrrev_b32', 'v12', 2, 'v2')
    e.valu('v_sub_u32', 'v12', 0, 'v12')
    e.valu('v_and_b32', 'v12', 3, 'v12')
    e.valu('v_xor_b32', 'v12', 'v12', 'v3')
    e.valu('v_lshlrev_b32', 'v12', 4, 'v12')
    e.valu('v_lshlrev_b32', 'v13', 6, 'v2')
    e.valu('v_add_u32', 'v12', 'v12', 'v13')
    for sl in range(4):
        e.valu('v_add_u32', vr(96 + sl), sl * S1 + SLOT, 'v12')
    for i in range(16):
        with only(False):
            e.wait(vm=min(18, 9 * (15 - i)))
        e.barrier()
        if os.environ.get('ENTRY') and i in (0, 1):
            stamp()
        sl = (i + 1) % 4
        for qt in range(3):
            e.ds_read('ds_read_b128', vr(BF + 4 * qt, 4), vr(96 + sl), qt * 1024)
        for nt in range(4):
            e.ds_read('ds_read_b64_tr_b16', vr(AF + 4 * nt, 2), vr(92 + sl), nt * 32)
            e.ds_read('ds_read_b64_tr_b16', vr(AF + 4 * nt + 2, 2), vr(92 + sl), nt * 32 + 4 * PITCH)
        parts = p1_parts(i + 3) if i + 3 < 16 else []
        for nt in range(4):
            if parts:
                with only(False):
                    for f in parts[nt * 2:(nt + 1) * 2]:
                        f()
            if nt in (1, 3):
                k = 2 * i + (nt >> 1)
                n0 = PRE0 + (NPRE - PRE0) * k // 32
                n1 = PRE0 + (NPRE - PRE0) * (k + 1) // 32
                if n1 > n0:
                    with only(True):
                        kvpre(n0, n1)
            e.wait(lgkm=2 * (3 - nt))
            for qt in range(3):
                d = vr(ACC + (nt * 3 + qt) * 4, 4)
                e.mfma(d, vr(AF + 4 * nt, 4), vr(BF + 4 * qt, 4), d if i else 0)
    stamp()
    e.valu('v_mul_u32_u24', 'v12', PITCH, 'v2')
    e.valu('v_lshlrev_b32', 'v13', 3, 'v3')
    e.valu('v_add_u32', 'v12', 'v12', 'v13')
    e.salu('s_lshl_b32', 's13', 's3', 7)
    e.salu('s_add_u32', 's13', 's13', QBASE)
    e.valu('v_add_u32', 'v12', 's13', 'v12')
    for nt in range(4):
        for qt in range(3):
            a = ACC + (nt * 3 + qt) * 4
            e.valu('v_cvt_pk_bf16_f32', vr(a), vr(a), vr(a + 1))
            e.valu('v_cvt_pk_bf16_f32', vr(a + 1), vr(a + 2), vr(a + 3))
            e.ds_write('ds_write_b64', 'v12', vr(a, 2), qt * 16 * PITCH + nt * 32)
    VOFF = 92
    KA = 96
    VAD = 100
    M = 108
    AL = 111
    ONES = 116
    LT = [2, 8, 120]
    TT = [124, 125, 126, 127, 114, 115]
    for jj in range(4):
        e.valu('v_add_u32', 'v13', 4 * jj, 'v3')
        e.valu('v_and_b32', 'v14', 7, 'v13')
        e.valu('v_lshlrev_b32', 'v14', 1, 'v14')
        e.scmp('s_cmp_eq_u32', 's8', 0)
        e.sop('s_cselect_b64 vcc, -1, 0')
        e.valu('v_cndmask_b32', 'v13', 'v14', 'v13', 'vcc')
        e.valu('v_xor_b32', 'v13', 'v13', 'v2')
        e.valu('v_lshlrev_b32', 'v13', 4, 'v13')
        e.valu('v_lshlrev_b32', 'v14', 8, 'v3')
        e.valu('v_add_u32', vr(VOFF + jj), 'v13', 'v14')
    e.salu('s_lshr_b32', 's13', 's3', 2)
    e.salu('s_lshl_b32', 's13', 's13', 16)
    e.salu('s_add_u32', 's15', 's36', 's13')
    e.salu('s_and_b32', 's13', 's3', 1)
    e.salu('s_lshl_b32', 's13', 's13', 13)
    e.salu('s_add_u32', 's15', 's15', 's13')
    e.salu('s_lshl_b32', 's9', 's3', 13)
    def kvdma1(it, j):
        bf = it & 1
        e.salu('s_add_u32', 'm0', 's9', bf * 65536 + j * 1024)
        e.salu('s_add_u32', 's14', 's15', it * 64 * 256 + j * 1024)
        e.dma(vr(VOFF + (j & 3)), 's[52:55]', 's14', mods=KVMOD)
    def kvdma(it):
        if os.environ.get('KVI', '1') == '1':
            return
        for j in range(8):
            kvdma1(it, j)
    e.salu('s_lshr_b32', 's13', 's3', 2)
    e.salu('s_lshl_b32', 's13', 's13', 15)
    e.valu('v_xor_b32', 'v13', 'v3', 'v2')
    e.valu('v_lshlrev_b32', 'v13', 4, 'v13')
    e.valu('v_lshlrev_b32', 'v14', 8, 'v2')
    e.valu('v_add_u32', 'v13', 'v13', 'v14')
    e.valu('v_add_u32', vr(KA), 's13', 'v13')
    for c in range(1, 4):
        e.valu('v_xor_b32', vr(KA + c), c << 6, vr(KA))
    e.valu('v_lshlrev_b32', 'v13', 2, 'v3')
    e.valu('v_add_u32', 'v13', 'v13', 'v4')
    e.valu('v_and_b32', 'v14', 7, 'v13')
    e.valu('v_lshlrev_b32', 'v14', 5, 'v14')
    e.valu('v_lshlrev_b32', 'v13', 8, 'v13')
    e.valu('v_add_u32', 'v13', 'v13', 'v14')
    e.valu('v_lshlrev_b32', 'v14', 3, 'v5')
    e.valu('v_add_u32', 'v13', 'v13', 'v14')
    e.salu('s_add_u32', 's13', 's13', 16384)
    e.valu('v_add_u32', vr(VAD), 's13', 'v13')
    for dt in range(1, 8):
        e.valu('v_xor_b32', vr(VAD + dt), dt << 5, vr(VAD))
    WA = 64
    e.salu('s_and_b32', 's13', 's3', 1)
    e.salu('s_lshl_b32', 's13', 's13', 1)
    e.salu('s_add_u32', 's13', 's13', 's8')
    e.salu('s_lshl_b32', 's13', 's13', 14)
    for jj in range(4):
        e.valu('v_add_u32', vr(WA + jj), 's13', vr(VOFF + jj))
    e.wait(lgkm=0)
    e.barrier()
    with only(True):
        e.wait(vm=NPRE - 16)
        for i in range(16):
            e.ds_write('ds_write_b128', vr(WA + (i & 3)), vr(KVPRE + 4 * i, 4), i * 1024)
    QF = 16
    e.salu('s_and_b32', 's13', 's3', 3)
    e.salu('s_lshl_b32', 's13', 's13', 8)
    e.salu('s_add_u32', 's13', 's13', QBASE)
    e.valu('v_add_u32', 'v13', 's13', vr(VB))
    for qt in range(3):
        for c in range(4):
            e.ds_read('ds_read_b128', vr(QF + (qt * 4 + c) * 4, 4), 'v13', qt * 16 * PITCH + c * 64)
    e.wait(lgkm=0)
    e.barrier()
    if NPRE == 32:
        with only(True):
            for jj in range(4):
                e.valu('v_add_u32', vr(WA + jj), 0x10000, vr(WA + jj))
            e.wait(vm=0)
            for i in range(16):
                e.ds_write('ds_write_b128', vr(WA + (i & 3)), vr(KVPRE + 64 + 4 * i, 4), i * 1024)
            e.wait(lgkm=0)
    else:
        for j in range(8):
            kvdma1(1, j)
    O = 128
    S = 64
    Sreg = [224 + i for i in range(32)] + [80 + i for i in range(12)] + [12, 13, 14, 15]
    def Sx(kt, qt, r=None, n=1):
        idx = kt * 3 + qt
        base = Sreg[idx * 4]
        if r is None:
            return vr(base, 4)
        return vr(base + r)
    FR = 64
    e.salu('s_mov_b32', 's13', f2u(CSCALE))
    SC = 's13'
    e.salu('s_mov_b32', 's62', f2u(float(THR) / CSCALE))
    for i in range(4):
        e.valu('v_mov_b32', vr(ONES + i), 0x3F803F80)
    if PRIO:
        with only(PRIO == 2):
            e.sop('s_setprio 1')
    for it in range(4):
        e.comment('attention iteration %d' % it)
        if it in (1, 2):
            stamp()
        if it >= 1:
            if it >= 2 or NPRE != 32:
                e.wait(vm=0)
            e.barrier()
            if os.environ.get('SUB') and it == 1:
                stamp()
        steps = [(kt, c) for kt in range(4) for c in range(4)]
        def kread(s):
            kt, c = steps[s]
            e.ds_read('ds_read_b128', vr(FR + 4 * (s % 4), 4), vr(KA + c), kt * 4096)
        for s in range(3):
            kread(s)
        for s in range(16):
            if s + 3 < 16:
                kread(s + 3)
            if 1 <= it < 3 and (s & 1):
                kvdma1(it + 1, s >> 1)
            e.wait(lgkm=min(3, 15 - s))
            kt, c = steps[s]
            for qt in range(3):
                d = Sx(kt, qt)
                e.mfma(d, vr(FR + 4 * (s % 4), 4), vr(QF + (qt * 4 + c) * 4, 4), d if c else 0)
        if os.environ.get('SUB') and it == 1:
            stamp()
        if it == 3:
            e.salu('s_lshl_b32', 's14', 's4', 19)
            e.salu('s_lshl_b32', 's61', 's5', 15)
            e.salu('s_add_u32', 's14', 's14', 's61')
            e.salu('s_lshl_b32', 's61', 's3', 12)
            e.salu('s_add_u32', 's61', 's61', 's14')
            for j in range(4):
                e.salu('s_add_u32', 's14', 's61', j * 1024)
                e.bload('buffer_load_dwordx4', 'v[16:19]', 'v6', 's[48:51]', 's14')
        vsteps = [(tp, dt) for tp in range(2) for dt in range(8)]
        def vread(s):
            tp, dt = vsteps[s]
            e.ds_read('ds_read_b64_tr_b16', vr(FR + 4 * (s % 4), 2), vr(VAD + dt), (2 * tp) * 4096)
            e.ds_read('ds_read_b64_tr_b16', vr(FR + 4 * (s % 4) + 2, 2), vr(VAD + dt), (2 * tp + 1) * 4096)
        for s in range(3):
            vread(s)
        T = [vr(x) for x in TT]
        for qt in range(3):
            vals = [Sx(kt, qt, r) for kt in range(4) for r in range(4)]
            t = T[qt]
            e.valu('v_max3_f32', t, vals[0], vals[1], vals[2])
            for k in range(3, 15, 2):
                e.valu('v_max3_f32', t, t, vals[k], vals[k + 1])
            e.valu('v_max_f32', t, t, vals[15])
        for qt in range(3):
            e.valu('v_mov_b32', T[3 + qt], T[qt])
        for qt in range(3):
            e.perm('v_permlane32_swap_b32', T[qt], T[3 + qt])
        for qt in range(3):
            e.valu('v_max_f32', T[qt], T[qt], T[3 + qt])
        for qt in range(3):
            e.valu('v_mov_b32', T[3 + qt], T[qt])
        for qt in range(3):
            e.perm('v_permlane16_swap_b32', T[qt], T[3 + qt])
        for qt in range(3):
            e.valu('v_max_f32', T[qt], T[qt], T[3 + qt])
        if it == 0:
            for qt in range(3):
                e.valu('v_mov_b32', vr(M + qt), T[qt])
        else:
            for qt in range(3):
                e.valu('v_sub_f32', T[3 + qt], T[qt], vr(M + qt))
            e.valu('v_max3_f32', T[3], T[3], T[4], T[5])
            e.valu('v_cmp_lt_f32', 'vcc', 's62', T[3])
            lskip = newlab()
            e.nop(4)
            e.sop('s_cbranch_vccz %s' % lskip)
            for qt in range(3):
                t = T[qt]
                e.valu('v_max_f32', t, t, vr(M + qt))
                e.valu('v_sub_f32', vr(AL + qt), vr(M + qt), t)
                e.valu('v_mul_f32', vr(AL + qt), SC, vr(AL + qt))
                e.valu('v_exp_f32', vr(AL + qt), vr(AL + qt))
                e.valu('v_mov_b32', vr(M + qt), t)
            for dt in range(8):
                for qt in range(3):
                    for r in range(4):
                        o = vr(O + (dt * 3 + qt) * 4 + r)
                        e.valu('v_mul_f32', o, o, vr(AL + qt))
            for qt in range(3):
                for r in range(4):
                    e.valu('v_mul_f32', vr(LT[qt] + r), vr(LT[qt] + r), vr(AL + qt))
            e.raw(lskip + ':')
            e.nop(2)
        for qt in range(3):
            e.valu('v_mul_f32', T[qt], SC, vr(M + qt))
        for qt in range(3):
            t = T[qt]
            vals = [Sx(kt, qt, r) for kt in range(4) for r in range(4)]
            for v in vals:
                e.valu('v_fma_f32', v, v, SC, '-' + t)
            for v in vals:
                e.valu('v_exp_f32', v, v)
            for tp in range(2):
                a = [Sx(2 * tp, qt, r) for r in range(4)]
                b = [Sx(2 * tp + 1, qt, r) for r in range(4)]
                e.valu('v_cvt_pk_bf16_f32', a[0], a[0], a[1])
                e.valu('v_cvt_pk_bf16_f32', a[1], a[2], a[3])
                e.valu('v_cvt_pk_bf16_f32', a[2], b[0], b[1])
                e.valu('v_cvt_pk_bf16_f32', a[3], b[2], b[3])
        if os.environ.get('SUB') and it == 1:
            stamp()
        for s in range(16):
            if s + 3 < 16:
                vread(s + 3)
            e.wait(lgkm=2 * min(3, 15 - s))
            tp, dt = vsteps[s]
            for qt in range(3):
                d = vr(O + (dt * 3 + qt) * 4, 4)
                e.mfma(d, vr(FR + 4 * (s % 4), 4), Sx(2 * tp, qt), d if (it or tp) else 0)
            if dt == 0:
                for qt in range(3):
                    d = vr(LT[qt], 4)
                    e.mfma(d, vr(ONES, 4), Sx(2 * tp, qt), d if (it or tp) else 0)
        for c in range(4):
            e.valu('v_xor_b32', vr(KA + c), 0x10000, vr(KA + c))
        for dt in range(8):
            e.valu('v_xor_b32', vr(VAD + dt), 0x10000, vr(VAD + dt))
    if PRIO:
        e.sop('s_setprio 0')
    stamp()
    X = 20
    Lr = [FR + 0, FR + 1, FR + 2]
    for qt in range(3):
        e.valu('v_mov_b32', vr(Lr[qt]), vr(LT[qt]))
    e.valu('v_and_b32', 'v1', 63, 'v0')
    e.valu('v_and_b32', 'v2', 15, 'v1')
    e.valu('v_lshrrev_b32', 'v3', 4, 'v1')
    e.valu('v_lshrrev_b32', 'v4', 2, 'v1')
    e.valu('v_and_b32', 'v4', 3, 'v4')
    e.valu('v_and_b32', 'v5', 3, 'v1')
    gemm_addrs()
    e.salu('s_mul_i32', 's14', 's3', 384)
    e.salu('s_add_u32', 's14', 's14', MLBASE)
    e.valu('v_lshlrev_b32', 'v13', 3, 'v2')
    e.valu('v_add_u32', 'v13', 's14', 'v13')
    for qt in range(3):
        e.valu('v_mov_b32', vr(FR + 4 + 2 * qt), vr(M + qt))
        e.valu('v_mov_b32', vr(FR + 5 + 2 * qt), vr(Lr[qt]))
        e.ds_write('ds_write_b64', 'v13', vr(FR + 4 + 2 * qt, 2), qt * 128)
    e.salu('s_xor_b32', 's14', 's3', 4)
    e.salu('s_mul_i32', 's14', 's14', 384)
    e.salu('s_add_u32', 's14', 's14', MLBASE)
    e.valu('v_lshlrev_b32', 'v12', 3, 'v2')
    e.valu('v_add_u32', 'v12', 's14', 'v12')
    e.salu('s_mul_i32', 's14', 's3', 12288)
    e.salu('s_add_u32', 's14', 's14', XCHG)
    e.valu('v_add_u32', 'v13', 's14', 'v6')
    e.salu('s_xor_b32', 's14', 's3', 4)
    e.salu('s_mul_i32', 's14', 's14', 12288)
    e.salu('s_add_u32', 's14', 's14', XCHG)
    e.valu('v_add_u32', 'v14', 's14', 'v6')
    e.valu('v_mul_u32_u24', 'v15', PITCH, 'v2')
    e.valu('v_lshlrev_b32', 'v7', 3, 'v3')
    e.valu('v_add_u32', 'v15', 'v15', 'v7')
    e.salu('s_and_b32', 's14', 's3', 3)
    e.salu('s_lshl_b32', 's14', 's14', 8)
    e.salu('s_add_u32', 's14', 's14', XBASE)
    e.valu('v_add_u32', 'v15', 's14', 'v15')
    e.barrier()
    e.scmp('s_cmp_ge_u32', 's3', 4)
    e.sop('s_cbranch_scc1 L_kh1')
    PM = FR + 10
    def xchg(send0, keep0):
        for i in range(12):
            e.ds_write('ds_write_b128', 'v13', vr(O + (send0 * 3) * 4 + i * 4, 4), i * 1024)
        e.wait(lgkm=0)
        e.barrier()
        for qt in range(3):
            e.ds_read('ds_read_b64', vr(PM + 2 * qt, 2), 'v12', qt * 128)
        XR = [X + 4 * i for i in range(11)] + [92]
        for i in range(12):
            e.ds_read('ds_read_b128', vr(XR[i], 4), 'v14', i * 1024)
        e.wait(lgkm=12)
        T = [vr(x) for x in TT]
        for qt in range(3):
            pm = vr(PM + 2 * qt); pl = vr(PM + 2 * qt + 1)
            mn = T[3]; fs = vr(AL + qt); fo = T[qt]
            e.valu('v_max_f32', mn, pm, vr(M + qt))
            e.valu('v_sub_f32', fs, vr(M + qt), mn)
            e.valu('v_mul_f32', fs, SC, fs)
            e.valu('v_exp_f32', fs, fs)
            e.valu('v_sub_f32', fo, pm, mn)
            e.valu('v_mul_f32', fo, SC, fo)
            e.valu('v_exp_f32', fo, fo)
            e.valu('v_mul_f32', mn, vr(Lr[qt]), fs)
            e.valu('v_fma_f32', mn, pl, fo, mn)
            e.valu('v_rcp_f32', mn, mn)
            e.valu('v_mul_f32', fs, fs, mn)
            e.valu('v_mul_f32', fo, fo, mn)
        e.wait(lgkm=0)
        for dd in range(4):
            for qt in range(3):
                a = O + ((keep0 + dd) * 3 + qt) * 4
                p = XR[dd * 3 + qt]
                for r in range(4):
                    e.valu('v_mul_f32', vr(a + r), vr(a + r), vr(AL + qt))
                    e.valu('v_fma_f32', vr(a + r), vr(p + r), T[qt], vr(a + r))
                e.valu('v_cvt_pk_bf16_f32', vr(a), vr(a), vr(a + 1))
                e.valu('v_cvt_pk_bf16_f32', vr(a + 1), vr(a + 2), vr(a + 3))
                e.ds_write('ds_write_b64', 'v15', vr(a, 2), qt * 16 * PITCH + (keep0 + dd) * 32)
    xchg(4, 0)
    e.sop('s_branch L_khdone')
    e.raw('L_kh1:')
    e.nop(4)
    xchg(0, 4)
    e.raw('L_khdone:')
    e.wait(vm=0, lgkm=0)
    e.barrier()
    stamp()
    e.salu('s_mul_i32', 's62', 's3', 4 * PITCH)
    e.salu('s_lshr_b32', 's13', 's3', 1)
    e.salu('s_lshl_b32', 's13', 's13', 7)
    e.salu('s_add_u32', 's62', 's62', 's13')
    e.salu('s_add_u32', 's62', 's62', RING)
    e.salu('s_lshl_b32', 's63', 's4', 19)
    e.salu('s_lshl_b32', 's13', 's3', 12)
    e.salu('s_add_u32', 's63', 's63', 's13')
    for ch in range(2):
        for f in wdma_parts('s[48:51]', 's63', 1024, ch, 4, 's62'):
            f()
    gemm_loop('s[48:51]', 's63', 1024, False)
    e.salu('s_mul_i32', 's15', 's2', 49152)
    e.salu('s_mul_i32', 's14', 's3', 6144)
    e.salu('s_add_u32', 's15', 's15', 's14')
    for qt in range(3):
        for np_ in range(2):
            a0 = ACC + ((2 * np_) * 3 + qt) * 4
            a1 = ACC + ((2 * np_ + 1) * 3 + qt) * 4
            d = 64 + (qt * 2 + np_) * 4
            e.valu('v_cvt_pk_bf16_f32', vr(d), vr(a0), vr(a0 + 1))
            e.valu('v_cvt_pk_bf16_f32', vr(d + 1), vr(a0 + 2), vr(a0 + 3))
            e.valu('v_cvt_pk_bf16_f32', vr(d + 2), vr(a1), vr(a1 + 1))
            e.valu('v_cvt_pk_bf16_f32', vr(d + 3), vr(a1 + 2), vr(a1 + 3))
            e.bstore('buffer_store_dwordx4', vr(d, 4), 'v6', 's[56:59]', 's15', (qt * 2 + np_) * 1024 if (qt * 2 + np_) < 4 else 0) if (qt * 2 + np_) < 4 else None
            if (qt * 2 + np_) >= 4:
                e.salu('s_add_u32', 's14', 's15', (qt * 2 + np_) * 1024)
                e.bstore('buffer_store_dwordx4', vr(d, 4), 'v6', 's[56:59]', 's14', 0)
    stamp()
    e.wait(vm=0)
    stamp()
    stamp_flush()
    e.raw('L_end1:')
    e.raw('    s_endpgm')

    e.hist = []
    e.raw('.globl %s' % K2)
    e.raw('.p2align 8')
    e.raw('.type %s,@function' % K2)
    e.raw('%s:' % K2)
    e.scmp('s_cmp_ge_u32', 's2', 384)
    e.sop('s_cbranch_scc1 L_end2')
    e.smem('s_load_dwordx2 s[4:5], s[0:1], 80', 's[4:5]')
    e.smem('s_load_dwordx2 s[8:9], s[0:1], 96', 's[8:9]')
    e.valu('v_lshrrev_b32', 'v1', 6, 'v0')
    e.valu('v_and_b32', 'v2', 63, 'v0')
    e.rfl('s3', 'v1')
    e.salu('s_mul_i32', 's12', 's2', 43691)
    e.salu('s_lshr_b32', 's12', 's12', 19)
    e.salu('s_mul_i32', 's13', 's12', 12)
    e.salu('s_sub_u32', 's13', 's2', 's13')
    e.salu('s_lshl_b32', 's13', 's13', 2)
    e.salu('s_add_u32', 's13', 's13', 's3')
    e.salu('s_mul_i32', 's14', 's13', 43)
    e.salu('s_lshr_b32', 's14', 's14', 8)
    e.salu('s_mul_i32', 's15', 's14', 6)
    e.salu('s_sub_u32', 's15', 's13', 's15')
    e.valu('v_lshlrev_b32', 'v3', 4, 'v2')
    e.salu('s_mul_i32', 's16', 's12', 8 * 49152)
    e.salu('s_lshl_b32', 's17', 's13', 10)
    e.salu('s_add_u32', 's16', 's16', 's17')
    e.salu('s_and_b32', 's18', 's12', 15)
    e.salu('s_mul_i32', 's18', 's18', 48 * 2048)
    e.salu('s_lshr_b32', 's19', 's12', 4)
    e.salu('s_lshl_b32', 's19', 's19', 10)
    e.salu('s_add_u32', 's18', 's18', 's19')
    e.salu('s_lshl_b32', 's19', 's14', 7)
    e.salu('s_add_u32', 's18', 's18', 's19')
    e.salu('s_lshr_b32', 's19', 's15', 1)
    e.salu('s_lshl_b32', 's19', 's19', 15)
    e.salu('s_add_u32', 's18', 's18', 's19')
    e.salu('s_and_b32', 's19', 's15', 1)
    e.salu('s_lshl_b32', 's19', 's19', 6)
    e.salu('s_add_u32', 's18', 's18', 's19')
    e.valu('v_and_b32', 'v4', 15, 'v2')
    e.valu('v_lshlrev_b32', 'v4', 11, 'v4')
    e.valu('v_lshrrev_b32', 'v5', 4, 'v2')
    e.valu('v_lshlrev_b32', 'v5', 3, 'v5')
    e.valu('v_add_u32', 'v4', 'v4', 'v5')
    e.wait(lgkm=0)
    e.salu('s_mov_b32', 's6', 16 * 48 * 1024 * 2)
    e.salu('s_mov_b32', 's7', 0x20000)
    e.salu('s_mov_b32', 's10', 256 * 49152)
    e.salu('s_mov_b32', 's11', 0x20000)
    for hh in range(8):
        e.salu('s_add_u32', 's20', 's16', hh * 49152)
        e.bload('buffer_load_dwordx4', vr(8 + hh * 4, 4), 'v3', 's[8:11]', 's20', 0)
    for hh in range(8):
        e.wait(vm=7 - hh)
        for i in range(4):
            src = vr(8 + hh * 4 + i)
            if hh == 0:
                e.valu('v_lshlrev_b32', vr(40 + 2 * i), 16, src)
                e.valu('v_and_b32', vr(41 + 2 * i), 0xffff0000, src)
            else:
                e.valu('v_lshlrev_b32', 'v48', 16, src)
                e.valu('v_and_b32', 'v49', 0xffff0000, src)
                e.valu('v_add_f32', vr(40 + 2 * i), vr(40 + 2 * i), 'v48')
                e.valu('v_add_f32', vr(41 + 2 * i), vr(41 + 2 * i), 'v49')
    for i in range(4):
        e.valu('v_cvt_pk_bf16_f32', vr(50 + i), vr(40 + 2 * i), vr(41 + 2 * i))
    e.bstore('buffer_store_dwordx2', 'v[50:51]', 'v4', 's[4:7]', 's18', 0)
    e.bstore('buffer_store_dwordx2', 'v[52:53]', 'v4', 's[4:7]', 's18', 32)
    e.raw('L_end2:')
    e.raw('    s_endpgm')

    e.raw('.section .rodata,"a"')
    for (k, nv) in ((K1, 256), (K2, 56)):
        e.raw('.p2align 6')
        e.raw('.amdhsa_kernel %s' % k)
        e.raw('  .amdhsa_next_free_vgpr %d' % nv)
        e.raw('  .amdhsa_next_free_sgpr 102')
        e.raw('  .amdhsa_accum_offset %d' % nv)
        e.raw('  .amdhsa_group_segment_fixed_size 0')
        e.raw('  .amdhsa_kernarg_size 104')
        e.raw('  .amdhsa_user_sgpr_count 2')
        e.raw('  .amdhsa_user_sgpr_kernarg_segment_ptr 1')
        e.raw('  .amdhsa_system_sgpr_workgroup_id_x 1')
        e.raw('.end_amdhsa_kernel')
    hdr = header()
    hdr.append('; @launch kernel=%s grid=(256,1,1) block=(512,1,1) lds=%d' % (K1, LDS_BYTES))
    hdr.append('; @launch kernel=%s grid=(384,1,1) block=(256,1,1) lds=0' % K2)
    return '\n'.join(hdr) + '\n' + e.text()

if __name__ == '__main__':
    out = sys.argv[1] if len(sys.argv) > 1 else 'cdna_kernels/%s.s' % NAME
    open(out, 'w').write(gen())
    print('written', out)
```

```python
import sys, os, struct
sys.path.insert(0, 'gen')
from emit import E, vr, sr

NAME = "concat_heads__gqa_block_cached__gqa_block_cached__near_ridge"
PITCH = 1056
XBASE = 0
RING = 50688
SLOT = 34304
QBASE = 113152
MLBASE = 153600
XCHG = 50688
LDS_BYTES = 163840
CSCALE = 0.08838834764831845 * 1.4426950408889634
STAMP = int(os.environ.get('STAMP', '0'))
PRIO = int(os.environ.get('PRIO', '1'))
KVMOD = os.environ.get('KVMOD', 'nt')
THR = os.environ.get('THR', '8')

def f2u(f):
    return struct.unpack('<I', struct.pack('<f', f))[0]

def header():
    src = open('cdna_kernels/%s.s.ref' % NAME).read().split('\n')
    out = []
    for l in src:
        if l.startswith(';') and '@launch' not in l:
            out.append(l)
        elif l.startswith(';'):
            continue
        else:
            break
    return out

def gen():
    e = E()
    lab = [0]
    def newlab():
        lab[0] += 1
        return 'L_%d' % lab[0]
    stamp_n = [0]
    def stamp():
        if not STAMP or stamp_n[0] >= 8:
            return
        i = stamp_n[0]; stamp_n[0] += 1
        e.smem('%s s[%d:%d]' % ('s_memrealtime' if os.environ.get('RT') else 's_memtime', 64 + 2 * i, 65 + 2 * i), 's[%d:%d]' % (64 + 2 * i, 65 + 2 * i))
    def stamp_flush():
        if not STAMP:
            return
        e.wait(lgkm=0)
        e.salu('s_lshl_b32', 's14', 's2', 8)
        e.salu('s_lshl_b32', 's15', 's3', 5)
        e.salu('s_add_u32', 's14', 's14', 's15')
        e.salu('s_add_u32', 's14', 's14', 0x2000000)
        e.salu('s_mov_b32', 's58', 0x4000000)
        e.valu('v_mov_b32', 'v12', 0)
        for i in range(stamp_n[0]):
            e.valu('v_mov_b32', vr(16 + i), 's%d' % (64 + 2 * i))
        for i in range(stamp_n[0], 8):
            e.valu('v_mov_b32', vr(16 + i), 's64')
        e.bstore('buffer_store_dwordx4', 'v[16:19]', 'v12', 's[56:59]', 's14', 0)
        e.bstore('buffer_store_dwordx4', 'v[20:23]', 'v12', 's[56:59]', 's14', 16)
    class only:
        def __init__(s, hi):
            s.hi = hi
        def __enter__(s):
            s.l = newlab()
            e.scmp('s_cmp_ge_u32', 's3', 4)
            e.sop('s_cbranch_scc%d %s' % (0 if s.hi else 1, s.l))
        def __exit__(s, *a):
            e.raw(s.l + ':')

    K1 = NAME + "_kernel"
    K2 = "gqa_reduce_kernel"
    e.raw('.amdgcn_target "amdgcn-amd-amdhsa--gfx950"')
    e.raw('.text')
    e.raw('.globl %s' % K1)
    e.raw('.p2align 8')
    e.raw('.type %s,@function' % K1)
    e.raw('%s:' % K1)
    e.scmp('s_cmp_ge_u32', 's2', 256)
    e.sop('s_cbranch_scc1 L_end1')
    if os.environ.get('ENTRY'):
        stamp()
    e.smem('s_load_dwordx16 s[16:31], s[0:1], 0', 's[16:31]')
    e.smem('s_load_dwordx4 s[32:35], s[0:1], 64', 's[32:35]')
    e.smem('s_load_dwordx2 s[38:39], s[0:1], 96', 's[38:39]')
    e.valu('v_lshrrev_b32', 'v2', 6, 'v0')
    e.valu('v_and_b32', 'v1', 63, 'v0')
    e.rfl('s3', 'v2')
    e.salu('s_and_b32', 's4', 's2', 7)
    e.salu('s_lshr_b32', 's5', 's2', 3)
    e.salu('s_and_b32', 's5', 's5', 15)
    e.salu('s_lshr_b32', 's6', 's2', 7)
    e.valu('v_and_b32', 'v2', 15, 'v1')
    e.valu('v_lshrrev_b32', 'v3', 4, 'v1')
    e.valu('v_lshrrev_b32', 'v4', 2, 'v1')
    e.valu('v_and_b32', 'v4', 3, 'v4')
    e.valu('v_and_b32', 'v5', 3, 'v1')
    e.valu('v_lshlrev_b32', 'v6', 4, 'v1')
    e.salu('s_lshr_b32', 's7', 's3', 1)
    e.salu('s_and_b32', 's8', 's7', 1)
    e.wait(lgkm=0)
    e.scmp('s_cmp_eq_u32', 's6', 0)
    for (dst, a, b) in ((40, 16, 26), (60, 18, 28), (62, 20, 30), (44, 22, 32), (48, 24, 34)):
        e.sop('s_cselect_b32 s%d, s%d, s%d' % (dst, a, b))
        e.sop('s_cselect_b32 s%d, s%d, s%d' % (dst + 1, a + 1, b + 1))
    e.salu('s_mov_b32', 's42', 16 * 48 * 512 * 2)
    e.salu('s_mov_b32', 's43', 0x20000)
    e.salu('s_mov_b32', 's46', 512 * 4096 * 2)
    e.salu('s_mov_b32', 's47', 0x20000)
    e.salu('s_mov_b32', 's50', 512 * 4096 * 2)
    e.salu('s_mov_b32', 's51', 0x20000)
    e.scmp('s_cmp_eq_u32', 's8', 0)
    e.sop('s_cselect_b32 s52, s60, s62')
    e.sop('s_cselect_b32 s53, s61, s63')
    e.salu('s_mov_b32', 's54', 16 * 8 * 512 * 128 * 2)
    e.salu('s_mov_b32', 's55', 0x20000)
    e.salu('s_mov_b32', 's56', 's38')
    e.salu('s_mov_b32', 's57', 's39')
    e.salu('s_mov_b32', 's58', 256 * 48 * 512 * 4)
    e.salu('s_mov_b32', 's59', 0x20000)
    stamp()
    e.salu('s_lshl_b32', 's36', 's5', 3)
    e.salu('s_add_u32', 's36', 's36', 's4')
    e.salu('s_lshl_b32', 's36', 's36', 17)
    KVPRE = 128
    e.salu('s_and_b32', 's37', 's3', 1)
    e.salu('s_lshl_b32', 's37', 's37', 16)
    e.salu('s_add_u32', 's37', 's37', 's36')
    def kvpre(lo, hi):
        for i in range(lo, hi):
            e.salu('s_add_u32', 's14', 's37', i * 1024)
            e.bload('buffer_load_dwordx4', vr(KVPRE + 4 * i, 4), 'v6', 's[52:55]', 's14', mods=KVMOD)
    PRE0 = int(os.environ.get('PRE0', '0'))
    NPRE = int(os.environ.get('NPRE', '16'))
    with only(True):
        kvpre(0, PRE0)
    e.salu('s_mul_i32', 's10', 's3', 8 * PITCH + 128)
    e.salu('s_add_u32', 's10', 's10', RING)
    e.salu('s_lshl_b32', 's11', 's3', 16)
    e.salu('s_lshl_b32', 's13', 's4', 10)
    e.salu('s_add_u32', 's11', 's11', 's13')
    e.salu('s_lshl_b32', 's12', 's4', 19)
    e.salu('s_lshl_b32', 's13', 's3', 13)
    e.salu('s_add_u32', 's12', 's12', 's13')

    def wdma(srd, srow, rstride, chunk):
        slot = chunk % 3
        e.salu('s_add_u32', 's60', 's5', chunk)
        e.salu('s_and_b32', 's60', 's60', 15)
        e.salu('s_mul_i32', 's60', 's60', 32 * rstride)
        e.salu('s_add_u32', 's60', 's60', srow)
        for j in range(8):
            e.salu('s_add_u32', 'm0', 's10', slot * SLOT + j * PITCH)
            e.salu('s_add_u32', 's14', 's60', j * rstride)
            e.dma('v6', srd, 's14')

    S1 = SLOT + 3072
    def slot1(i):
        return ((i + 1) % 4) * S1
    e.valu('v_sub_u32', 'v100', 0, 'v3')
    e.valu('v_and_b32', 'v100', 3, 'v100')
    e.valu('v_xor_b32', 'v100', 'v100', 'v5')
    e.valu('v_lshlrev_b32', 'v100', 4, 'v100')
    e.valu('v_lshrrev_b32', 'v101', 2, 'v1')
    e.valu('v_lshlrev_b32', 'v101', 10, 'v101')
    e.valu('v_add_u32', 'v100', 'v100', 'v101')
    e.salu('s_min_u32', 's63', 's3', 2)
    e.salu('s_lshl_b32', 's15', 's63', 14)
    e.salu('s_mul_i32', 's13', 's5', 49152)
    e.salu('s_add_u32', 's15', 's15', 's13')
    e.salu('s_lshl_b32', 's63', 's63', 10)
    e.salu('s_mul_i32', 's10', 's3', 8 * PITCH + 128)
    def p1_parts(chunk):
        sl = slot1(chunk)
        parts = []
        def head():
            e.salu('s_add_u32', 's60', 's5', chunk)
            e.salu('s_and_b32', 's60', 's60', 15)
            e.salu('s_lshl_b32', 's61', 's60', 6)
            e.salu('s_mul_i32', 's60', 's60', 32 * 8192)
            e.salu('s_add_u32', 's60', 's60', 's11')
            e.salu('s_add_u32', 'm0', 's63', sl + SLOT)
            e.salu('s_add_u32', 's14', 's15', 's61')
            e.dma('v100', 's[40:43]', 's14')
        for j in range(8):
            def f(j=j):
                if j == 0:
                    head()
                e.salu('s_add_u32', 'm0', 's10', sl + j * PITCH)
                e.salu('s_add_u32', 's14', 's60', j * 8192)
                e.dma('v6', 's[44:47]', 's14')
            parts.append(f)
        return parts
    with only(False):
        for ch in range(3):
            for f in p1_parts(ch):
                f()

    VA = [8, 9, 10]
    VB = 11
    def gemm_addrs():
        e.valu('v_lshlrev_b32', 'v7', 3, 'v3')
        e.valu('v_add_u32', 'v7', 'v7', 'v4')
        e.valu('v_mul_u32_u24', 'v7', PITCH, 'v7')
        e.valu('v_lshlrev_b32', 'v8', 7, 'v3')
        e.valu('v_add_u32', 'v7', 'v7', 'v8')
        e.valu('v_lshlrev_b32', 'v8', 3, 'v5')
        e.valu('v_add_u32', 'v7', 'v7', 'v8')
        e.salu('s_lshl_b32', 's9', 's3', 7)
        e.salu('s_add_u32', 's9', 's9', RING)
        e.valu('v_add_u32', 'v8', 's9', 'v7')
        e.valu('v_add_u32', 'v9', SLOT, 'v8')
        e.valu('v_add_u32', 'v10', 2 * SLOT, 'v8')
        e.valu('v_mul_u32_u24', 'v11', PITCH, 'v2')
        e.valu('v_lshlrev_b32', 'v12', 4, 'v3')
        e.valu('v_add_u32', 'v11', 'v11', 'v12')
    gemm_addrs()

    ACC = 16
    AF = 64
    BF = 80

    def wdma_parts(srd, srow, rstride, chunk, nrows, mbase):
        slot = chunk % 3
        parts = []
        def head():
            e.salu('s_add_u32', 's60', 's5', chunk)
            e.salu('s_and_b32', 's60', 's60', 15)
            e.salu('s_mul_i32', 's60', 's60', 32 * rstride)
            e.salu('s_add_u32', 's60', 's60', srow)
        for j in range(nrows):
            def f(j=j):
                if j == 0:
                    head()
                e.salu('s_add_u32', 'm0', mbase, slot * SLOT + j * PITCH)
                e.salu('s_add_u32', 's14', 's60', j * rstride)
                e.dma('v6', srd, 's14')
            parts.append(f)
        return parts

    def gemm_loop(srd, srow, rstride, split):
        for i in range(16):
            if split:
                with only(False):
                    e.wait(vm=8 if i < 15 else 0)
            else:
                e.wait(vm=4 if i < 15 else 0)
            e.barrier()
            if os.environ.get('ENTRY') and srd == 's[44:47]' and i in (0, 1):
                stamp()
            e.salu('s_add_u32', 's61', 's5', i)
            e.salu('s_and_b32', 's61', 's61', 15)
            e.salu('s_lshl_b32', 's61', 's61', 6)
            e.valu('v_add_u32', 'v7', 's61', vr(VB))
            for qt in range(3):
                if os.environ.get('NOB') and not split:
                    continue
                e.ds_read('ds_read_b128', vr(BF + 4 * qt, 4), 'v7', XBASE + qt * 16 * PITCH)
            for nt in range(4):
                e.ds_read('ds_read_b64_tr_b16', vr(AF + 4 * nt, 2), vr(VA[i % 3]), nt * 32)
                e.ds_read('ds_read_b64_tr_b16', vr(AF + 4 * nt + 2, 2), vr(VA[i % 3]), nt * 32 + 4 * PITCH)
            parts = []
            if i + 2 < 16:
                parts = wdma_parts(srd, srow, rstride, i + 2, 8 if split else 4, 's10' if split else 's62')
            per = len(parts) // 4
            for nt in range(4):
                if parts:
                    if split:
                        with only(False):
                            for f in parts[nt * per:(nt + 1) * per]:
                                f()
                    else:
                        for f in parts[nt * per:(nt + 1) * per]:
                            f()
                if split and srd == 's[44:47]' and nt in (1, 3):
                    k = 2 * i + (nt >> 1)
                    n0 = PRE0 + (32 - PRE0) * k // 32
                    n1 = PRE0 + (32 - PRE0) * (k + 1) // 32
                    if n1 > n0:
                        with only(True):
                            kvpre(n0, n1)
                e.wait(lgkm=2 * (3 - nt))
                for qt in range(3):
                    if os.environ.get('NOM') and not split:
                        continue
                    d = vr(ACC + (nt * 3 + qt) * 4, 4)
                    e.mfma(d, vr(AF + 4 * nt, 4), vr(BF + 4 * qt, 4), d if i else 0)

    for sl in range(4):
        e.valu('v_add_u32', vr(92 + sl), sl * S1 - RING, 'v8')
    e.valu('v_lshrrev_b32', 'v12', 2, 'v2')
    e.valu('v_sub_u32', 'v12', 0, 'v12')
    e.valu('v_and_b32', 'v12', 3, 'v12')
    e.valu('v_xor_b32', 'v12', 'v12', 'v3')
    e.valu('v_lshlrev_b32', 'v12', 4, 'v12')
    e.valu('v_lshlrev_b32', 'v13', 6, 'v2')
    e.valu('v_add_u32', 'v12', 'v12', 'v13')
    for sl in range(4):
        e.valu('v_add_u32', vr(96 + sl), sl * S1 + SLOT, 'v12')
    for i in range(16):
        with only(False):
            e.wait(vm=min(18, 9 * (15 - i)))
        e.barrier()
        if os.environ.get('ENTRY') and i in (0, 1):
            stamp()
        sl = (i + 1) % 4
        for qt in range(3):
            e.ds_read('ds_read_b128', vr(BF + 4 * qt, 4), vr(96 + sl), qt * 1024)
        for nt in range(4):
            e.ds_read('ds_read_b64_tr_b16', vr(AF + 4 * nt, 2), vr(92 + sl), nt * 32)
            e.ds_read('ds_read_b64_tr_b16', vr(AF + 4 * nt + 2, 2), vr(92 + sl), nt * 32 + 4 * PITCH)
        parts = p1_parts(i + 3) if i + 3 < 16 else []
        for nt in range(4):
            if parts:
                with only(False):
                    for f in parts[nt * 2:(nt + 1) * 2]:
                        f()
            if nt in (1, 3):
                k = 2 * i + (nt >> 1)
                K0 = 2 * int(os.environ.get('KVS', '0')); K1_ = 2 * int(os.environ.get('KVE', '16'))
                def cnt(kk):
                    return PRE0 + (NPRE - PRE0) * min(max(kk - K0, 0), K1_ - K0) // (K1_ - K0)
                n0 = cnt(k); n1 = cnt(k + 1)
                if n1 > n0:
                    with only(True):
                        kvpre(n0, n1)
            e.wait(lgkm=2 * (3 - nt))
            for qt in range(3):
                d = vr(ACC + (nt * 3 + qt) * 4, 4)
                e.mfma(d, vr(AF + 4 * nt, 4), vr(BF + 4 * qt, 4), d if i else 0)
    stamp()
    e.valu('v_mul_u32_u24', 'v12', PITCH, 'v2')
    e.valu('v_lshlrev_b32', 'v13', 3, 'v3')
    e.valu('v_add_u32', 'v12', 'v12', 'v13')
    e.salu('s_lshl_b32', 's13', 's3', 7)
    e.salu('s_add_u32', 's13', 's13', QBASE)
    e.valu('v_add_u32', 'v12', 's13', 'v12')
    for nt in range(4):
        for qt in range(3):
            a = ACC + (nt * 3 + qt) * 4
            e.valu('v_cvt_pk_bf16_f32', vr(a), vr(a), vr(a + 1))
            e.valu('v_cvt_pk_bf16_f32', vr(a + 1), vr(a + 2), vr(a + 3))
            e.ds_write('ds_write_b64', 'v12', vr(a, 2), qt * 16 * PITCH + nt * 32)
    VOFF = 92
    KA = 96
    VAD = 100
    M = 108
    AL = 111
    ONES = 116
    LT = [2, 8, 120]
    TT = [124, 125, 126, 127, 114, 115]
    for jj in range(4):
        e.valu('v_add_u32', 'v13', 4 * jj, 'v3')
        e.valu('v_and_b32', 'v14', 7, 'v13')
        e.valu('v_lshlrev_b32', 'v14', 1, 'v14')
        e.scmp('s_cmp_eq_u32', 's8', 0)
        e.sop('s_cselect_b64 vcc, -1, 0')
        e.valu('v_cndmask_b32', 'v13', 'v14', 'v13', 'vcc')
        e.valu('v_xor_b32', 'v13', 'v13', 'v2')
        e.valu('v_lshlrev_b32', 'v13', 4, 'v13')
        e.valu('v_lshlrev_b32', 'v14', 8, 'v3')
        e.valu('v_add_u32', vr(VOFF + jj), 'v13', 'v14')
    e.salu('s_lshr_b32', 's13', 's3', 2)
    e.salu('s_lshl_b32', 's13', 's13', 16)
    e.salu('s_add_u32', 's15', 's36', 's13')
    e.salu('s_and_b32', 's13', 's3', 1)
    e.salu('s_lshl_b32', 's13', 's13', 13)
    e.salu('s_add_u32', 's15', 's15', 's13')
    e.salu('s_lshl_b32', 's9', 's3', 13)
    def kvdma1(it, j):
        bf = it & 1
        e.salu('s_add_u32', 'm0', 's9', bf * 65536 + j * 1024)
        e.salu('s_add_u32', 's14', 's15', it * 64 * 256 + j * 1024)
        e.dma(vr(VOFF + (j & 3)), 's[52:55]', 's14', mods=KVMOD)
    def kvdma(it):
        if os.environ.get('KVI', '1') == '1':
            return
        for j in range(8):
            kvdma1(it, j)
    e.salu('s_lshr_b32', 's13', 's3', 2)
    e.salu('s_lshl_b32', 's13', 's13', 15)
    e.valu('v_xor_b32', 'v13', 'v3', 'v2')
    e.valu('v_lshlrev_b32', 'v13', 4, 'v13')
    e.valu('v_lshlrev_b32', 'v14', 8, 'v2')
    e.valu('v_add_u32', 'v13', 'v13', 'v14')
    e.valu('v_add_u32', vr(KA), 's13', 'v13')
    for c in range(1, 4):
        e.valu('v_xor_b32', vr(KA + c), c << 6, vr(KA))
    e.valu('v_lshlrev_b32', 'v13', 2, 'v3')
    e.valu('v_add_u32', 'v13', 'v13', 'v4')
    e.valu('v_and_b32', 'v14', 7, 'v13')
    e.valu('v_lshlrev_b32', 'v14', 5, 'v14')
    e.valu('v_lshlrev_b32', 'v13', 8, 'v13')
    e.valu('v_add_u32', 'v13', 'v13', 'v14')
    e.valu('v_lshlrev_b32', 'v14', 3, 'v5')
    e.valu('v_add_u32', 'v13', 'v13', 'v14')
    e.salu('s_add_u32', 's13', 's13', 16384)
    e.valu('v_add_u32', vr(VAD), 's13', 'v13')
    for dt in range(1, 8):
        e.valu('v_xor_b32', vr(VAD + dt), dt << 5, vr(VAD))
    WA = 64
    e.salu('s_and_b32', 's13', 's3', 1)
    e.salu('s_lshl_b32', 's13', 's13', 1)
    e.salu('s_add_u32', 's13', 's13', 's8')
    e.salu('s_lshl_b32', 's13', 's13', 14)
    for jj in range(4):
        e.valu('v_add_u32', vr(WA + jj), 's13', vr(VOFF + jj))
    e.wait(lgkm=0)
    e.barrier()
    with only(True):
        e.wait(vm=NPRE - 16)
        for i in range(16):
            e.ds_write('ds_write_b128', vr(WA + (i & 3)), vr(KVPRE + 4 * i, 4), i * 1024)
    QF = 16
    e.salu('s_and_b32', 's13', 's3', 3)
    e.salu('s_lshl_b32', 's13', 's13', 8)
    e.salu('s_add_u32', 's13', 's13', QBASE)
    e.valu('v_add_u32', 'v13', 's13', vr(VB))
    for qt in range(3):
        for c in range(4):
            e.ds_read('ds_read_b128', vr(QF + (qt * 4 + c) * 4, 4), 'v13', qt * 16 * PITCH + c * 64)
    e.wait(lgkm=0)
    e.barrier()
    if NPRE == 32:
        with only(True):
            for jj in range(4):
                e.valu('v_add_u32', vr(WA + jj), 0x10000, vr(WA + jj))
            e.wait(vm=0)
            for i in range(16):
                e.ds_write('ds_write_b128', vr(WA + (i & 3)), vr(KVPRE + 64 + 4 * i, 4), i * 1024)
            e.wait(lgkm=0)
    else:
        for j in range(8):
            kvdma1(1, j)
    O = 128
    S = 64
    Sreg = [224 + i for i in range(32)] + [80 + i for i in range(12)] + [12, 13, 14, 15]
    def Sx(kt, qt, r=None, n=1):
        idx = kt * 3 + qt
        base = Sreg[idx * 4]
        if r is None:
            return vr(base, 4)
        return vr(base + r)
    FR = 64
    e.salu('s_mov_b32', 's13', f2u(CSCALE))
    SC = 's13'
    e.salu('s_mov_b32', 's62', f2u(float(THR) / CSCALE))
    for i in range(4):
        e.valu('v_mov_b32', vr(ONES + i), 0x3F803F80)
    if PRIO:
        with only(PRIO == 2):
            e.sop('s_setprio 1')
    for it in range(4):
        e.comment('attention iteration %d' % it)
        if it in (1, 2):
            stamp()
        if it >= 1:
            if it >= 2 or NPRE != 32:
                e.wait(vm=0)
            e.barrier()
            if os.environ.get('SUB') and it == 1:
                stamp()
        steps = [(kt, c) for kt in range(4) for c in range(4)]
        def kread(s):
            kt, c = steps[s]
            e.ds_read('ds_read_b128', vr(FR + 4 * (s % 4), 4), vr(KA + c), kt * 4096)
        for s in range(3):
            kread(s)
        for s in range(16):
            if s + 3 < 16:
                kread(s + 3)
            if 1 <= it < 3 and (s & 1):
                kvdma1(it + 1, s >> 1)
            e.wait(lgkm=min(3, 15 - s))
            kt, c = steps[s]
            for qt in range(3):
                d = Sx(kt, qt)
                e.mfma(d, vr(FR + 4 * (s % 4), 4), vr(QF + (qt * 4 + c) * 4, 4), d if c else 0)
        if os.environ.get('SUB') and it == 1:
            stamp()
        if it == 3:
            e.salu('s_lshl_b32', 's14', 's4', 19)
            e.salu('s_lshl_b32', 's61', 's5', 15)
            e.salu('s_add_u32', 's14', 's14', 's61')
            e.salu('s_lshl_b32', 's61', 's3', 12)
            e.salu('s_add_u32', 's61', 's61', 's14')
            for j in range(4):
                e.salu('s_add_u32', 's14', 's61', j * 1024)
                e.bload('buffer_load_dwordx4', 'v[16:19]', 'v6', 's[48:51]', 's14')
        vsteps = [(tp, dt) for tp in range(2) for dt in range(8)]
        def vread(s):
            tp, dt = vsteps[s]
            e.ds_read('ds_read_b64_tr_b16', vr(FR + 4 * (s % 4), 2), vr(VAD + dt), (2 * tp) * 4096)
            e.ds_read('ds_read_b64_tr_b16', vr(FR + 4 * (s % 4) + 2, 2), vr(VAD + dt), (2 * tp + 1) * 4096)
        for s in range(3):
            vread(s)
        T = [vr(x) for x in TT]
        for qt in range(3):
            vals = [Sx(kt, qt, r) for kt in range(4) for r in range(4)]
            t = T[qt]
            e.valu('v_max3_f32', t, vals[0], vals[1], vals[2])
            for k in range(3, 15, 2):
                e.valu('v_max3_f32', t, t, vals[k], vals[k + 1])
            e.valu('v_max_f32', t, t, vals[15])
        for qt in range(3):
            e.valu('v_mov_b32', T[3 + qt], T[qt])
        for qt in range(3):
            e.perm('v_permlane32_swap_b32', T[qt], T[3 + qt])
        for qt in range(3):
            e.valu('v_max_f32', T[qt], T[qt], T[3 + qt])
        for qt in range(3):
            e.valu('v_mov_b32', T[3 + qt], T[qt])
        for qt in range(3):
            e.perm('v_permlane16_swap_b32', T[qt], T[3 + qt])
        for qt in range(3):
            e.valu('v_max_f32', T[qt], T[qt], T[3 + qt])
        if it == 0:
            for qt in range(3):
                e.valu('v_mov_b32', vr(M + qt), T[qt])
        else:
            for qt in range(3):
                e.valu('v_sub_f32', T[3 + qt], T[qt], vr(M + qt))
            e.valu('v_max3_f32', T[3], T[3], T[4], T[5])
            e.valu('v_cmp_lt_f32', 'vcc', 's62', T[3])
            lskip = newlab()
            e.nop(4)
            e.sop('s_cbranch_vccz %s' % lskip)
            for qt in range(3):
                t = T[qt]
                e.valu('v_max_f32', t, t, vr(M + qt))
                e.valu('v_sub_f32', vr(AL + qt), vr(M + qt), t)
                e.valu('v_mul_f32', vr(AL + qt), SC, vr(AL + qt))
                e.valu('v_exp_f32', vr(AL + qt), vr(AL + qt))
                e.valu('v_mov_b32', vr(M + qt), t)
            for dt in range(8):
                for qt in range(3):
                    for r in range(4):
                        o = vr(O + (dt * 3 + qt) * 4 + r)
                        e.valu('v_mul_f32', o, o, vr(AL + qt))
            for qt in range(3):
                for r in range(4):
                    e.valu('v_mul_f32', vr(LT[qt] + r), vr(LT[qt] + r), vr(AL + qt))
            e.raw(lskip + ':')
            e.nop(2)
        for qt in range(3):
            e.valu('v_mul_f32', T[qt], SC, vr(M + qt))
        for qt in range(3):
            t = T[qt]
            vals = [Sx(kt, qt, r) for kt in range(4) for r in range(4)]
            for v in vals:
                e.valu('v_fma_f32', v, v, SC, '-' + t)
            for v in vals:
                e.valu('v_exp_f32', v, v)
            for tp in range(2):
                a = [Sx(2 * tp, qt, r) for r in range(4)]
                b = [Sx(2 * tp + 1, qt, r) for r in range(4)]
                e.valu('v_cvt_pk_bf16_f32', a[0], a[0], a[1])
                e.valu('v_cvt_pk_bf16_f32', a[1], a[2], a[3])
                e.valu('v_cvt_pk_bf16_f32', a[2], b[0], b[1])
                e.valu('v_cvt_pk_bf16_f32', a[3], b[2], b[3])
        if os.environ.get('SUB') and it == 1:
            stamp()
        for s in range(16):
            if s + 3 < 16:
                vread(s + 3)
            e.wait(lgkm=2 * min(3, 15 - s))
            tp, dt = vsteps[s]
            for qt in range(3):
                d = vr(O + (dt * 3 + qt) * 4, 4)
                e.mfma(d, vr(FR + 4 * (s % 4), 4), Sx(2 * tp, qt), d if (it or tp) else 0)
            if dt == 0:
                for qt in range(3):
                    d = vr(LT[qt], 4)
                    e.mfma(d, vr(ONES, 4), Sx(2 * tp, qt), d if (it or tp) else 0)
        for c in range(4):
            e.valu('v_xor_b32', vr(KA + c), 0x10000, vr(KA + c))
        for dt in range(8):
            e.valu('v_xor_b32', vr(VAD + dt), 0x10000, vr(VAD + dt))
    if PRIO:
        e.sop('s_setprio 0')
    stamp()
    X = 20
    Lr = [FR + 0, FR + 1, FR + 2]
    for qt in range(3):
        e.valu('v_mov_b32', vr(Lr[qt]), vr(LT[qt]))
    e.valu('v_and_b32', 'v1', 63, 'v0')
    e.valu('v_and_b32', 'v2', 15, 'v1')
    e.valu('v_lshrrev_b32', 'v3', 4, 'v1')
    e.valu('v_lshrrev_b32', 'v4', 2, 'v1')
    e.valu('v_and_b32', 'v4', 3, 'v4')
    e.valu('v_and_b32', 'v5', 3, 'v1')
    gemm_addrs()
    e.salu('s_mul_i32', 's14', 's3', 384)
    e.salu('s_add_u32', 's14', 's14', MLBASE)
    e.valu('v_lshlrev_b32', 'v13', 3, 'v2')
    e.valu('v_add_u32', 'v13', 's14', 'v13')
    for qt in range(3):
        e.valu('v_mov_b32', vr(FR + 4 + 2 * qt), vr(M + qt))
        e.valu('v_mov_b32', vr(FR + 5 + 2 * qt), vr(Lr[qt]))
        e.ds_write('ds_write_b64', 'v13', vr(FR + 4 + 2 * qt, 2), qt * 128)
    e.salu('s_xor_b32', 's14', 's3', 4)
    e.salu('s_mul_i32', 's14', 's14', 384)
    e.salu('s_add_u32', 's14', 's14', MLBASE)
    e.valu('v_lshlrev_b32', 'v12', 3, 'v2')
    e.valu('v_add_u32', 'v12', 's14', 'v12')
    e.salu('s_mul_i32', 's14', 's3', 12288)
    e.salu('s_add_u32', 's14', 's14', XCHG)
    e.valu('v_add_u32', 'v13', 's14', 'v6')
    e.salu('s_xor_b32', 's14', 's3', 4)
    e.salu('s_mul_i32', 's14', 's14', 12288)
    e.salu('s_add_u32', 's14', 's14', XCHG)
    e.valu('v_add_u32', 'v14', 's14', 'v6')
    e.valu('v_mul_u32_u24', 'v15', PITCH, 'v2')
    e.valu('v_lshlrev_b32', 'v7', 3, 'v3')
    e.valu('v_add_u32', 'v15', 'v15', 'v7')
    e.salu('s_and_b32', 's14', 's3', 3)
    e.salu('s_lshl_b32', 's14', 's14', 8)
    e.salu('s_add_u32', 's14', 's14', XBASE)
    e.valu('v_add_u32', 'v15', 's14', 'v15')
    e.barrier()
    e.scmp('s_cmp_ge_u32', 's3', 4)
    e.sop('s_cbranch_scc1 L_kh1')
    PM = FR + 10
    def xchg(send0, keep0):
        for i in range(12):
            e.ds_write('ds_write_b128', 'v13', vr(O + (send0 * 3) * 4 + i * 4, 4), i * 1024)
        e.wait(lgkm=0)
        e.barrier()
        for qt in range(3):
            e.ds_read('ds_read_b64', vr(PM + 2 * qt, 2), 'v12', qt * 128)
        XR = [X + 4 * i for i in range(11)] + [92]
        for i in range(12):
            e.ds_read('ds_read_b128', vr(XR[i], 4), 'v14', i * 1024)
        e.wait(lgkm=12)
        T = [vr(x) for x in TT]
        for qt in range(3):
            pm = vr(PM + 2 * qt); pl = vr(PM + 2 * qt + 1)
            mn = T[3]; fs = vr(AL + qt); fo = T[qt]
            e.valu('v_max_f32', mn, pm, vr(M + qt))
            e.valu('v_sub_f32', fs, vr(M + qt), mn)
            e.valu('v_mul_f32', fs, SC, fs)
            e.valu('v_exp_f32', fs, fs)
            e.valu('v_sub_f32', fo, pm, mn)
            e.valu('v_mul_f32', fo, SC, fo)
            e.valu('v_exp_f32', fo, fo)
            e.valu('v_mul_f32', mn, vr(Lr[qt]), fs)
            e.valu('v_fma_f32', mn, pl, fo, mn)
            e.valu('v_rcp_f32', mn, mn)
            e.valu('v_mul_f32', fs, fs, mn)
            e.valu('v_mul_f32', fo, fo, mn)
        e.wait(lgkm=0)
        for dd in range(4):
            for qt in range(3):
                a = O + ((keep0 + dd) * 3 + qt) * 4
                p = XR[dd * 3 + qt]
                for r in range(4):
                    e.valu('v_mul_f32', vr(a + r), vr(a + r), vr(AL + qt))
                    e.valu('v_fma_f32', vr(a + r), vr(p + r), T[qt], vr(a + r))
                e.valu('v_cvt_pk_bf16_f32', vr(a), vr(a), vr(a + 1))
                e.valu('v_cvt_pk_bf16_f32', vr(a + 1), vr(a + 2), vr(a + 3))
                e.ds_write('ds_write_b64', 'v15', vr(a, 2), qt * 16 * PITCH + (keep0 + dd) * 32)
    xchg(4, 0)
    e.sop('s_branch L_khdone')
    e.raw('L_kh1:')
    e.nop(4)
    xchg(0, 4)
    e.raw('L_khdone:')
    e.wait(vm=0, lgkm=0)
    e.barrier()
    stamp()
    e.salu('s_mul_i32', 's62', 's3', 4 * PITCH)
    e.salu('s_lshr_b32', 's13', 's3', 1)
    e.salu('s_lshl_b32', 's13', 's13', 7)
    e.salu('s_add_u32', 's62', 's62', 's13')
    e.salu('s_add_u32', 's62', 's62', RING)
    e.salu('s_lshl_b32', 's63', 's4', 19)
    e.salu('s_lshl_b32', 's13', 's3', 12)
    e.salu('s_add_u32', 's63', 's63', 's13')
    for ch in range(2):
        for f in wdma_parts('s[48:51]', 's63', 1024, ch, 4, 's62'):
            f()
    gemm_loop('s[48:51]', 's63', 1024, False)
    e.salu('s_mul_i32', 's15', 's2', 49152)
    e.salu('s_mul_i32', 's14', 's3', 6144)
    e.salu('s_add_u32', 's15', 's15', 's14')
    for qt in range(3):
        for np_ in range(2):
            a0 = ACC + ((2 * np_) * 3 + qt) * 4
            a1 = ACC + ((2 * np_ + 1) * 3 + qt) * 4
            d = 64 + (qt * 2 + np_) * 4
            e.valu('v_cvt_pk_bf16_f32', vr(d), vr(a0), vr(a0 + 1))
            e.valu('v_cvt_pk_bf16_f32', vr(d + 1), vr(a0 + 2), vr(a0 + 3))
            e.valu('v_cvt_pk_bf16_f32', vr(d + 2), vr(a1), vr(a1 + 1))
            e.valu('v_cvt_pk_bf16_f32', vr(d + 3), vr(a1 + 2), vr(a1 + 3))
            e.bstore('buffer_store_dwordx4', vr(d, 4), 'v6', 's[56:59]', 's15', (qt * 2 + np_) * 1024 if (qt * 2 + np_) < 4 else 0) if (qt * 2 + np_) < 4 else None
            if (qt * 2 + np_) >= 4:
                e.salu('s_add_u32', 's14', 's15', (qt * 2 + np_) * 1024)
                e.bstore('buffer_store_dwordx4', vr(d, 4), 'v6', 's[56:59]', 's14', 0)
    stamp()
    e.wait(vm=0)
    stamp()
    stamp_flush()
    e.raw('L_end1:')
    e.raw('    s_endpgm')

    e.hist = []
    e.raw('.globl %s' % K2)
    e.raw('.p2align 8')
    e.raw('.type %s,@function' % K2)
    e.raw('%s:' % K2)
    e.scmp('s_cmp_ge_u32', 's2', 384)
    e.sop('s_cbranch_scc1 L_end2')
    e.smem('s_load_dwordx2 s[4:5], s[0:1], 80', 's[4:5]')
    e.smem('s_load_dwordx2 s[8:9], s[0:1], 96', 's[8:9]')
    e.valu('v_lshrrev_b32', 'v1', 6, 'v0')
    e.valu('v_and_b32', 'v2', 63, 'v0')
    e.rfl('s3', 'v1')
    e.salu('s_mul_i32', 's12', 's2', 43691)
    e.salu('s_lshr_b32', 's12', 's12', 19)
    e.salu('s_mul_i32', 's13', 's12', 12)
    e.salu('s_sub_u32', 's13', 's2', 's13')
    e.salu('s_lshl_b32', 's13', 's13', 2)
    e.salu('s_add_u32', 's13', 's13', 's3')
    e.salu('s_mul_i32', 's14', 's13', 43)
    e.salu('s_lshr_b32', 's14', 's14', 8)
    e.salu('s_mul_i32', 's15', 's14', 6)
    e.salu('s_sub_u32', 's15', 's13', 's15')
    e.valu('v_lshlrev_b32', 'v3', 4, 'v2')
    e.salu('s_mul_i32', 's16', 's12', 8 * 49152)
    e.salu('s_lshl_b32', 's17', 's13', 10)
    e.salu('s_add_u32', 's16', 's16', 's17')
    e.salu('s_and_b32', 's18', 's12', 15)
    e.salu('s_mul_i32', 's18', 's18', 48 * 2048)
    e.salu('s_lshr_b32', 's19', 's12', 4)
    e.salu('s_lshl_b32', 's19', 's19', 10)
    e.salu('s_add_u32', 's18', 's18', 's19')
    e.salu('s_lshl_b32', 's19', 's14', 7)
    e.salu('s_add_u32', 's18', 's18', 's19')
    e.salu('s_lshr_b32', 's19', 's15', 1)
    e.salu('s_lshl_b32', 's19', 's19', 15)
    e.salu('s_add_u32', 's18', 's18', 's19')
    e.salu('s_and_b32', 's19', 's15', 1)
    e.salu('s_lshl_b32', 's19', 's19', 6)
    e.salu('s_add_u32', 's18', 's18', 's19')
    e.valu('v_and_b32', 'v4', 15, 'v2')
    e.valu('v_lshlrev_b32', 'v4', 11, 'v4')
    e.valu('v_lshrrev_b32', 'v5', 4, 'v2')
    e.valu('v_lshlrev_b32', 'v5', 3, 'v5')
    e.valu('v_add_u32', 'v4', 'v4', 'v5')
    e.wait(lgkm=0)
    e.salu('s_mov_b32', 's6', 16 * 48 * 1024 * 2)
    e.salu('s_mov_b32', 's7', 0x20000)
    e.salu('s_mov_b32', 's10', 256 * 49152)
    e.salu('s_mov_b32', 's11', 0x20000)
    for hh in range(8):
        e.salu('s_add_u32', 's20', 's16', hh * 49152)
        e.bload('buffer_load_dwordx4', vr(8 + hh * 4, 4), 'v3', 's[8:11]', 's20', 0)
    for hh in range(8):
        e.wait(vm=7 - hh)
        for i in range(4):
            src = vr(8 + hh * 4 + i)
            if hh == 0:
                e.valu('v_lshlrev_b32', vr(40 + 2 * i), 16, src)
                e.valu('v_and_b32', vr(41 + 2 * i), 0xffff0000, src)
            else:
                e.valu('v_lshlrev_b32', 'v48', 16, src)
                e.valu('v_and_b32', 'v49', 0xffff0000, src)
                e.valu('v_add_f32', vr(40 + 2 * i), vr(40 + 2 * i), 'v48')
                e.valu('v_add_f32', vr(41 + 2 * i), vr(41 + 2 * i), 'v49')
    for i in range(4):
        e.valu('v_cvt_pk_bf16_f32', vr(50 + i), vr(40 + 2 * i), vr(41 + 2 * i))
    e.bstore('buffer_store_dwordx2', 'v[50:51]', 'v4', 's[4:7]', 's18', 0)
    e.bstore('buffer_store_dwordx2', 'v[52:53]', 'v4', 's[4:7]', 's18', 32)
    e.raw('L_end2:')
    e.raw('    s_endpgm')

    e.raw('.section .rodata,"a"')
    for (k, nv) in ((K1, 256), (K2, 56)):
        e.raw('.p2align 6')
        e.raw('.amdhsa_kernel %s' % k)
        e.raw('  .amdhsa_next_free_vgpr %d' % nv)
        e.raw('  .amdhsa_next_free_sgpr 102')
        e.raw('  .amdhsa_accum_offset %d' % nv)
        e.raw('  .amdhsa_group_segment_fixed_size 0')
        e.raw('  .amdhsa_kernarg_size 104')
        e.raw('  .amdhsa_user_sgpr_count 2')
        e.raw('  .amdhsa_user_sgpr_kernarg_segment_ptr 1')
        e.raw('  .amdhsa_system_sgpr_workgroup_id_x 1')
        e.raw('.end_amdhsa_kernel')
    hdr = header()
    hdr.append('; @launch kernel=%s grid=(256,1,1) block=(512,1,1) lds=%d' % (K1, LDS_BYTES))
    hdr.append('; @launch kernel=%s grid=(384,1,1) block=(256,1,1) lds=0' % K2)
    return '\n'.join(hdr) + '\n' + e.text()

if __name__ == '__main__':
    out = sys.argv[1] if len(sys.argv) > 1 else 'cdna_kernels/%s.s' % NAME
    open(out, 'w').write(gen())
    print('written', out)
```

```python
import sys, os, struct
sys.path.insert(0, 'gen')
from emit import E, vr, sr

NAME = "concat_heads__gqa_block_cached__gqa_block_cached__near_ridge"
PITCH = 1056
XBASE = 0
RING = 50688
SLOT = 34304
QBASE = 113152
MLBASE = 153600
XCHG = 50688
LDS_BYTES = 163840
CSCALE = 0.08838834764831845 * 1.4426950408889634
STAMP = int(os.environ.get('STAMP', '0'))
PRIO = int(os.environ.get('PRIO', '1'))
KVMOD = os.environ.get('KVMOD', 'nt')
THR = os.environ.get('THR', '8')

def f2u(f):
    return struct.unpack('<I', struct.pack('<f', f))[0]

def header():
    src = open('cdna_kernels/%s.s.ref' % NAME).read().split('\n')
    out = []
    for l in src:
        if l.startswith(';') and '@launch' not in l:
            out.append(l)
        elif l.startswith(';'):
            continue
        else:
            break
    return out

def gen():
    e = E()
    lab = [0]
    def newlab():
        lab[0] += 1
        return 'L_%d' % lab[0]
    stamp_n = [0]
    def stamp():
        if not STAMP or stamp_n[0] >= 8:
            return
        i = stamp_n[0]; stamp_n[0] += 1
        e.smem('%s s[%d:%d]' % ('s_memrealtime' if os.environ.get('RT') else 's_memtime', 64 + 2 * i, 65 + 2 * i), 's[%d:%d]' % (64 + 2 * i, 65 + 2 * i))
    def stamp_flush():
        if not STAMP:
            return
        e.wait(lgkm=0)
        e.salu('s_lshl_b32', 's14', 's2', 8)
        e.salu('s_lshl_b32', 's15', 's3', 5)
        e.salu('s_add_u32', 's14', 's14', 's15')
        e.salu('s_add_u32', 's14', 's14', 0x2000000)
        e.salu('s_mov_b32', 's58', 0x4000000)
        e.valu('v_mov_b32', 'v12', 0)
        for i in range(stamp_n[0]):
            e.valu('v_mov_b32', vr(16 + i), 's%d' % (64 + 2 * i))
        for i in range(stamp_n[0], 8):
            e.valu('v_mov_b32', vr(16 + i), 's64')
        e.bstore('buffer_store_dwordx4', 'v[16:19]', 'v12', 's[56:59]', 's14', 0)
        e.bstore('buffer_store_dwordx4', 'v[20:23]', 'v12', 's[56:59]', 's14', 16)
    class only:
        def __init__(s, hi):
            s.hi = hi
        def __enter__(s):
            s.l = newlab()
            e.scmp('s_cmp_ge_u32', 's3', 4)
            e.sop('s_cbranch_scc%d %s' % (0 if s.hi else 1, s.l))
        def __exit__(s, *a):
            e.raw(s.l + ':')

    K1 = NAME + "_kernel"
    K2 = "gqa_reduce_kernel"
    e.raw('.amdgcn_target "amdgcn-amd-amdhsa--gfx950"')
    e.raw('.text')
    e.raw('.globl %s' % K1)
    e.raw('.p2align 8')
    e.raw('.type %s,@function' % K1)
    e.raw('%s:' % K1)
    e.scmp('s_cmp_ge_u32', 's2', 256)
    e.sop('s_cbranch_scc1 L_end1')
    if os.environ.get('ENTRY'):
        stamp()
    e.smem('s_load_dwordx16 s[16:31], s[0:1], 0', 's[16:31]')
    e.smem('s_load_dwordx4 s[32:35], s[0:1], 64', 's[32:35]')
    e.smem('s_load_dwordx2 s[38:39], s[0:1], 96', 's[38:39]')
    e.valu('v_lshrrev_b32', 'v2', 6, 'v0')
    e.valu('v_and_b32', 'v1', 63, 'v0')
    e.rfl('s3', 'v2')
    e.salu('s_and_b32', 's4', 's2', 7)
    e.salu('s_lshr_b32', 's5', 's2', 3)
    e.salu('s_and_b32', 's5', 's5', 15)
    e.salu('s_lshr_b32', 's6', 's2', 7)
    e.valu('v_and_b32', 'v2', 15, 'v1')
    e.valu('v_lshrrev_b32', 'v3', 4, 'v1')
    e.valu('v_lshrrev_b32', 'v4', 2, 'v1')
    e.valu('v_and_b32', 'v4', 3, 'v4')
    e.valu('v_and_b32', 'v5', 3, 'v1')
    e.valu('v_lshlrev_b32', 'v6', 4, 'v1')
    e.salu('s_lshr_b32', 's7', 's3', 1)
    e.salu('s_and_b32', 's8', 's7', 1)
    e.wait(lgkm=0)
    e.scmp('s_cmp_eq_u32', 's6', 0)
    for (dst, a, b) in ((40, 16, 26), (60, 18, 28), (62, 20, 30), (44, 22, 32), (48, 24, 34)):
        e.sop('s_cselect_b32 s%d, s%d, s%d' % (dst, a, b))
        e.sop('s_cselect_b32 s%d, s%d, s%d' % (dst + 1, a + 1, b + 1))
    e.salu('s_mov_b32', 's42', 16 * 48 * 512 * 2)
    e.salu('s_mov_b32', 's43', 0x20000)
    e.salu('s_mov_b32', 's46', 512 * 4096 * 2)
    e.salu('s_mov_b32', 's47', 0x20000)
    e.salu('s_mov_b32', 's50', 512 * 4096 * 2)
    e.salu('s_mov_b32', 's51', 0x20000)
    e.scmp('s_cmp_eq_u32', 's8', 0)
    e.sop('s_cselect_b32 s52, s60, s62')
    e.sop('s_cselect_b32 s53, s61, s63')
    e.salu('s_mov_b32', 's54', 16 * 8 * 512 * 128 * 2)
    e.salu('s_mov_b32', 's55', 0x20000)
    e.salu('s_mov_b32', 's56', 's38')
    e.salu('s_mov_b32', 's57', 's39')
    e.salu('s_mov_b32', 's58', 256 * 48 * 512 * 4)
    e.salu('s_mov_b32', 's59', 0x20000)
    stamp()
    e.salu('s_lshl_b32', 's36', 's5', 3)
    e.salu('s_add_u32', 's36', 's36', 's4')
    e.salu('s_lshl_b32', 's36', 's36', 17)
    KVPRE = 128
    e.salu('s_and_b32', 's37', 's3', 1)
    e.salu('s_lshl_b32', 's37', 's37', 16)
    e.salu('s_add_u32', 's37', 's37', 's36')
    def kvpre(lo, hi):
        for i in range(lo, hi):
            e.salu('s_add_u32', 's14', 's37', i * 1024)
            e.bload('buffer_load_dwordx4', vr(KVPRE + 4 * i, 4), 'v6', 's[52:55]', 's14', mods=KVMOD)
    PRE0 = int(os.environ.get('PRE0', '0'))
    NPRE = int(os.environ.get('NPRE', '16'))
    with only(True):
        kvpre(0, PRE0)
    e.salu('s_mul_i32', 's10', 's3', 8 * PITCH + 128)
    e.salu('s_add_u32', 's10', 's10', RING)
    e.salu('s_lshl_b32', 's11', 's3', 16)
    e.salu('s_lshl_b32', 's13', 's4', 10)
    e.salu('s_add_u32', 's11', 's11', 's13')
    e.salu('s_lshl_b32', 's12', 's4', 19)
    e.salu('s_lshl_b32', 's13', 's3', 13)
    e.salu('s_add_u32', 's12', 's12', 's13')

    def wdma(srd, srow, rstride, chunk):
        slot = chunk % 3
        e.salu('s_add_u32', 's60', 's5', chunk)
        e.salu('s_and_b32', 's60', 's60', 15)
        e.salu('s_mul_i32', 's60', 's60', 32 * rstride)
        e.salu('s_add_u32', 's60', 's60', srow)
        for j in range(8):
            e.salu('s_add_u32', 'm0', 's10', slot * SLOT + j * PITCH)
            e.salu('s_add_u32', 's14', 's60', j * rstride)
            e.dma('v6', srd, 's14')

    S1 = SLOT + 3072
    def slot1(i):
        return ((i + 1) % 4) * S1
    e.salu('s_mul_i32', 's13', 's3', 6)
    e.valu('v_lshrrev_b32', 'v101', 2, 'v1')
    e.valu('v_add_u32', 'v101', 's13', 'v101')
    e.valu('v_lshrrev_b32', 'v100', 2, 'v101')
    e.valu('v_sub_u32', 'v100', 0, 'v100')
    e.valu('v_and_b32', 'v100', 3, 'v100')
    e.valu('v_xor_b32', 'v100', 'v100', 'v5')
    e.valu('v_lshlrev_b32', 'v100', 4, 'v100')
    e.valu('v_lshlrev_b32', 'v101', 10, 'v101')
    e.valu('v_add_u32', 'v100', 'v100', 'v101')
    e.salu('s_mul_i32', 's15', 's5', 49152)
    e.salu('s_mul_i32', 's63', 's3', 384)
    e.salu('s_mul_i32', 's10', 's3', 4 * PITCH)
    e.salu('s_lshr_b32', 's13', 's3', 1)
    e.salu('s_lshl_b32', 's13', 's13', 7)
    e.salu('s_add_u32', 's10', 's10', 's13')
    e.salu('s_lshl_b32', 's11', 's3', 15)
    e.salu('s_lshl_b32', 's13', 's4', 10)
    e.salu('s_add_u32', 's11', 's11', 's13')
    def p1_parts(chunk):
        sl = slot1(chunk)
        parts = []
        def head():
            e.salu('s_add_u32', 's60', 's5', chunk)
            e.salu('s_and_b32', 's60', 's60', 15)
            e.salu('s_lshl_b32', 's61', 's60', 6)
            e.salu('s_mul_i32', 's60', 's60', 32 * 8192)
            e.salu('s_add_u32', 's60', 's60', 's11')
            e.salu('s_add_u32', 'm0', 's63', sl + SLOT)
            e.salu('s_add_u32', 's14', 's15', 's61')
            e.sop('s_mov_b64 exec, 0xffffff')
            e.dma('v100', 's[40:43]', 's14')
            e.sop('s_mov_b64 exec, -1')
        for j in range(4):
            def f(j=j):
                if j == 0:
                    head()
                e.salu('s_add_u32', 'm0', 's10', sl + j * PITCH)
                e.salu('s_add_u32', 's14', 's60', j * 8192)
                e.dma('v6', 's[44:47]', 's14')
            parts.append(f)
        return parts
    for ch in range(3):
        for f in p1_parts(ch):
            f()

    VA = [8, 9, 10]
    VB = 11
    def gemm_addrs():
        e.valu('v_lshlrev_b32', 'v7', 3, 'v3')
        e.valu('v_add_u32', 'v7', 'v7', 'v4')
        e.valu('v_mul_u32_u24', 'v7', PITCH, 'v7')
        e.valu('v_lshlrev_b32', 'v8', 7, 'v3')
        e.valu('v_add_u32', 'v7', 'v7', 'v8')
        e.valu('v_lshlrev_b32', 'v8', 3, 'v5')
        e.valu('v_add_u32', 'v7', 'v7', 'v8')
        e.salu('s_lshl_b32', 's9', 's3', 7)
        e.salu('s_add_u32', 's9', 's9', RING)
        e.valu('v_add_u32', 'v8', 's9', 'v7')
        e.valu('v_add_u32', 'v9', SLOT, 'v8')
        e.valu('v_add_u32', 'v10', 2 * SLOT, 'v8')
        e.valu('v_mul_u32_u24', 'v11', PITCH, 'v2')
        e.valu('v_lshlrev_b32', 'v12', 4, 'v3')
        e.valu('v_add_u32', 'v11', 'v11', 'v12')
    gemm_addrs()

    ACC = 16
    AF = 64
    BF = 80

    def wdma_parts(srd, srow, rstride, chunk, nrows, mbase):
        slot = chunk % 3
        parts = []
        def head():
            e.salu('s_add_u32', 's60', 's5', chunk)
            e.salu('s_and_b32', 's60', 's60', 15)
            e.salu('s_mul_i32', 's60', 's60', 32 * rstride)
            e.salu('s_add_u32', 's60', 's60', srow)
        for j in range(nrows):
            def f(j=j):
                if j == 0:
                    head()
                e.salu('s_add_u32', 'm0', mbase, slot * SLOT + j * PITCH)
                e.salu('s_add_u32', 's14', 's60', j * rstride)
                e.dma('v6', srd, 's14')
            parts.append(f)
        return parts

    def gemm_loop(srd, srow, rstride, split):
        for i in range(16):
            if split:
                with only(False):
                    e.wait(vm=8 if i < 15 else 0)
            else:
                e.wait(vm=4 if i < 15 else 0)
            e.barrier()
            if os.environ.get('ENTRY') and srd == 's[44:47]' and i in (0, 1):
                stamp()
            e.salu('s_add_u32', 's61', 's5', i)
            e.salu('s_and_b32', 's61', 's61', 15)
            e.salu('s_lshl_b32', 's61', 's61', 6)
            e.valu('v_add_u32', 'v7', 's61', vr(VB))
            for qt in range(3):
                if os.environ.get('NOB') and not split:
                    continue
                e.ds_read('ds_read_b128', vr(BF + 4 * qt, 4), 'v7', XBASE + qt * 16 * PITCH)
            for nt in range(4):
                e.ds_read('ds_read_b64_tr_b16', vr(AF + 4 * nt, 2), vr(VA[i % 3]), nt * 32)
                e.ds_read('ds_read_b64_tr_b16', vr(AF + 4 * nt + 2, 2), vr(VA[i % 3]), nt * 32 + 4 * PITCH)
            parts = []
            if i + 2 < 16:
                parts = wdma_parts(srd, srow, rstride, i + 2, 8 if split else 4, 's10' if split else 's62')
            per = len(parts) // 4
            for nt in range(4):
                if parts:
                    if split:
                        with only(False):
                            for f in parts[nt * per:(nt + 1) * per]:
                                f()
                    else:
                        for f in parts[nt * per:(nt + 1) * per]:
                            f()
                if split and srd == 's[44:47]' and nt in (1, 3):
                    k = 2 * i + (nt >> 1)
                    n0 = PRE0 + (32 - PRE0) * k // 32
                    n1 = PRE0 + (32 - PRE0) * (k + 1) // 32
                    if n1 > n0:
                        with only(True):
                            kvpre(n0, n1)
                e.wait(lgkm=2 * (3 - nt))
                for qt in range(3):
                    if os.environ.get('NOM') and not split:
                        continue
                    d = vr(ACC + (nt * 3 + qt) * 4, 4)
                    e.mfma(d, vr(AF + 4 * nt, 4), vr(BF + 4 * qt, 4), d if i else 0)

    for sl in range(4):
        e.valu('v_add_u32', vr(92 + sl), sl * S1 - RING, 'v8')
    e.valu('v_lshrrev_b32', 'v12', 2, 'v2')
    e.valu('v_sub_u32', 'v12', 0, 'v12')
    e.valu('v_and_b32', 'v12', 3, 'v12')
    e.valu('v_xor_b32', 'v12', 'v12', 'v3')
    e.valu('v_lshlrev_b32', 'v12', 4, 'v12')
    e.valu('v_lshlrev_b32', 'v13', 6, 'v2')
    e.valu('v_add_u32', 'v12', 'v12', 'v13')
    for sl in range(4):
        e.valu('v_add_u32', vr(96 + sl), sl * S1 + SLOT, 'v12')
    nkv = 0
    KVS = int(os.environ.get('KVS', '13'))
    for i in range(16):
        base = min(10, 5 * (15 - i))
        if nkv == 0:
            e.wait(vm=base)
        else:
            with only(False):
                e.wait(vm=base)
            with only(True):
                e.wait(vm=base + nkv)
        e.barrier()
        sl = (i + 1) % 4
        for qt in range(3):
            e.ds_read('ds_read_b128', vr(BF + 4 * qt, 4), vr(96 + sl), qt * 1024)
        for nt in range(4):
            e.ds_read('ds_read_b64_tr_b16', vr(AF + 4 * nt, 2), vr(92 + sl), nt * 32)
            e.ds_read('ds_read_b64_tr_b16', vr(AF + 4 * nt + 2, 2), vr(92 + sl), nt * 32 + 4 * PITCH)
        parts = p1_parts(i + 3) if i + 3 < 16 else []
        for nt in range(4):
            if parts:
                parts[nt]()
            if i >= KVS and nkv < 16:
                n1 = min(16, nkv + (16 + (16 - KVS) * 4 - 5) // ((16 - KVS) * 4 - 4))
                with only(True):
                    kvpre(nkv, n1)
                nkv = n1
            e.wait(lgkm=2 * (3 - nt))
            for qt in range(3):
                d = vr(ACC + (nt * 3 + qt) * 4, 4)
                e.mfma(d, vr(AF + 4 * nt, 4), vr(BF + 4 * qt, 4), d if i else 0)
    assert nkv == 16
    stamp()
    e.valu('v_mul_u32_u24', 'v12', PITCH, 'v2')
    e.valu('v_lshlrev_b32', 'v13', 3, 'v3')
    e.valu('v_add_u32', 'v12', 'v12', 'v13')
    e.salu('s_lshl_b32', 's13', 's3', 7)
    e.salu('s_add_u32', 's13', 's13', QBASE)
    e.valu('v_add_u32', 'v12', 's13', 'v12')
    for nt in range(4):
        for qt in range(3):
            a = ACC + (nt * 3 + qt) * 4
            e.valu('v_cvt_pk_bf16_f32', vr(a), vr(a), vr(a + 1))
            e.valu('v_cvt_pk_bf16_f32', vr(a + 1), vr(a + 2), vr(a + 3))
            e.ds_write('ds_write_b64', 'v12', vr(a, 2), qt * 16 * PITCH + nt * 32)
    VOFF = 92
    KA = 96
    VAD = 100
    M = 108
    AL = 111
    ONES = 116
    LT = [2, 8, 120]
    TT = [124, 125, 126, 127, 114, 115]
    for jj in range(4):
        e.valu('v_add_u32', 'v13', 4 * jj, 'v3')
        e.valu('v_and_b32', 'v14', 7, 'v13')
        e.valu('v_lshlrev_b32', 'v14', 1, 'v14')
        e.scmp('s_cmp_eq_u32', 's8', 0)
        e.sop('s_cselect_b64 vcc, -1, 0')
        e.valu('v_cndmask_b32', 'v13', 'v14', 'v13', 'vcc')
        e.valu('v_xor_b32', 'v13', 'v13', 'v2')
        e.valu('v_lshlrev_b32', 'v13', 4, 'v13')
        e.valu('v_lshlrev_b32', 'v14', 8, 'v3')
        e.valu('v_add_u32', vr(VOFF + jj), 'v13', 'v14')
    e.salu('s_lshr_b32', 's13', 's3', 2)
    e.salu('s_lshl_b32', 's13', 's13', 16)
    e.salu('s_add_u32', 's15', 's36', 's13')
    e.salu('s_and_b32', 's13', 's3', 1)
    e.salu('s_lshl_b32', 's13', 's13', 13)
    e.salu('s_add_u32', 's15', 's15', 's13')
    e.salu('s_lshl_b32', 's9', 's3', 13)
    def kvdma1(it, j):
        bf = it & 1
        e.salu('s_add_u32', 'm0', 's9', bf * 65536 + j * 1024)
        e.salu('s_add_u32', 's14', 's15', it * 64 * 256 + j * 1024)
        e.dma(vr(VOFF + (j & 3)), 's[52:55]', 's14', mods=KVMOD)
    def kvdma(it):
        if os.environ.get('KVI', '1') == '1':
            return
        for j in range(8):
            kvdma1(it, j)
    e.salu('s_lshr_b32', 's13', 's3', 2)
    e.salu('s_lshl_b32', 's13', 's13', 15)
    e.valu('v_xor_b32', 'v13', 'v3', 'v2')
    e.valu('v_lshlrev_b32', 'v13', 4, 'v13')
    e.valu('v_lshlrev_b32', 'v14', 8, 'v2')
    e.valu('v_add_u32', 'v13', 'v13', 'v14')
    e.valu('v_add_u32', vr(KA), 's13', 'v13')
    for c in range(1, 4):
        e.valu('v_xor_b32', vr(KA + c), c << 6, vr(KA))
    e.valu('v_lshlrev_b32', 'v13', 2, 'v3')
    e.valu('v_add_u32', 'v13', 'v13', 'v4')
    e.valu('v_and_b32', 'v14', 7, 'v13')
    e.valu('v_lshlrev_b32', 'v14', 5, 'v14')
    e.valu('v_lshlrev_b32', 'v13', 8, 'v13')
    e.valu('v_add_u32', 'v13', 'v13', 'v14')
    e.valu('v_lshlrev_b32', 'v14', 3, 'v5')
    e.valu('v_add_u32', 'v13', 'v13', 'v14')
    e.salu('s_add_u32', 's13', 's13', 16384)
    e.valu('v_add_u32', vr(VAD), 's13', 'v13')
    for dt in range(1, 8):
        e.valu('v_xor_b32', vr(VAD + dt), dt << 5, vr(VAD))
    WA = 64
    e.salu('s_and_b32', 's13', 's3', 1)
    e.salu('s_lshl_b32', 's13', 's13', 1)
    e.salu('s_add_u32', 's13', 's13', 's8')
    e.salu('s_lshl_b32', 's13', 's13', 14)
    for jj in range(4):
        e.valu('v_add_u32', vr(WA + jj), 's13', vr(VOFF + jj))
    e.wait(lgkm=0)
    e.barrier()
    with only(True):
        e.wait(vm=NPRE - 16)
        for i in range(16):
            e.ds_write('ds_write_b128', vr(WA + (i & 3)), vr(KVPRE + 4 * i, 4), i * 1024)
    QF = 16
    e.salu('s_and_b32', 's13', 's3', 3)
    e.salu('s_lshl_b32', 's13', 's13', 8)
    e.salu('s_add_u32', 's13', 's13', QBASE)
    e.valu('v_add_u32', 'v13', 's13', vr(VB))
    for qt in range(3):
        for c in range(4):
            e.ds_read('ds_read_b128', vr(QF + (qt * 4 + c) * 4, 4), 'v13', qt * 16 * PITCH + c * 64)
    e.wait(lgkm=0)
    e.barrier()
    if NPRE == 32:
        with only(True):
            for jj in range(4):
                e.valu('v_add_u32', vr(WA + jj), 0x10000, vr(WA + jj))
            e.wait(vm=0)
            for i in range(16):
                e.ds_write('ds_write_b128', vr(WA + (i & 3)), vr(KVPRE + 64 + 4 * i, 4), i * 1024)
            e.wait(lgkm=0)
    else:
        for j in range(8):
            kvdma1(1, j)
    O = 128
    S = 64
    Sreg = [224 + i for i in range(32)] + [80 + i for i in range(12)] + [12, 13, 14, 15]
    def Sx(kt, qt, r=None, n=1):
        idx = kt * 3 + qt
        base = Sreg[idx * 4]
        if r is None:
            return vr(base, 4)
        return vr(base + r)
    FR = 64
    e.salu('s_mov_b32', 's13', f2u(CSCALE))
    SC = 's13'
    e.salu('s_mov_b32', 's62', f2u(float(THR) / CSCALE))
    for i in range(4):
        e.valu('v_mov_b32', vr(ONES + i), 0x3F803F80)
    if PRIO:
        with only(PRIO == 2):
            e.sop('s_setprio 1')
    for it in range(4):
        e.comment('attention iteration %d' % it)
        if it in (1, 2):
            stamp()
        if it >= 1:
            if it >= 2 or NPRE != 32:
                e.wait(vm=0)
            e.barrier()
            if os.environ.get('SUB') and it == 1:
                stamp()
        steps = [(kt, c) for kt in range(4) for c in range(4)]
        def kread(s):
            kt, c = steps[s]
            e.ds_read('ds_read_b128', vr(FR + 4 * (s % 4), 4), vr(KA + c), kt * 4096)
        for s in range(3):
            kread(s)
        for s in range(16):
            if s + 3 < 16:
                kread(s + 3)
            if 1 <= it < 3 and (s & 1):
                kvdma1(it + 1, s >> 1)
            e.wait(lgkm=min(3, 15 - s))
            kt, c = steps[s]
            for qt in range(3):
                d = Sx(kt, qt)
                e.mfma(d, vr(FR + 4 * (s % 4), 4), vr(QF + (qt * 4 + c) * 4, 4), d if c else 0)
        if os.environ.get('SUB') and it == 1:
            stamp()
        if it == 3:
            e.salu('s_lshl_b32', 's14', 's4', 19)
            e.salu('s_lshl_b32', 's61', 's5', 15)
            e.salu('s_add_u32', 's14', 's14', 's61')
            e.salu('s_lshl_b32', 's61', 's3', 12)
            e.salu('s_add_u32', 's61', 's61', 's14')
            for j in range(4):
                e.salu('s_add_u32', 's14', 's61', j * 1024)
                e.bload('buffer_load_dwordx4', 'v[16:19]', 'v6', 's[48:51]', 's14')
        vsteps = [(tp, dt) for tp in range(2) for dt in range(8)]
        def vread(s):
            tp, dt = vsteps[s]
            e.ds_read('ds_read_b64_tr_b16', vr(FR + 4 * (s % 4), 2), vr(VAD + dt), (2 * tp) * 4096)
            e.ds_read('ds_read_b64_tr_b16', vr(FR + 4 * (s % 4) + 2, 2), vr(VAD + dt), (2 * tp + 1) * 4096)
        for s in range(3):
            vread(s)
        T = [vr(x) for x in TT]
        for qt in range(3):
            vals = [Sx(kt, qt, r) for kt in range(4) for r in range(4)]
            t = T[qt]
            e.valu('v_max3_f32', t, vals[0], vals[1], vals[2])
            for k in range(3, 15, 2):
                e.valu('v_max3_f32', t, t, vals[k], vals[k + 1])
            e.valu('v_max_f32', t, t, vals[15])
        for qt in range(3):
            e.valu('v_mov_b32', T[3 + qt], T[qt])
        for qt in range(3):
            e.perm('v_permlane32_swap_b32', T[qt], T[3 + qt])
        for qt in range(3):
            e.valu('v_max_f32', T[qt], T[qt], T[3 + qt])
        for qt in range(3):
            e.valu('v_mov_b32', T[3 + qt], T[qt])
        for qt in range(3):
            e.perm('v_permlane16_swap_b32', T[qt], T[3 + qt])
        for qt in range(3):
            e.valu('v_max_f32', T[qt], T[qt], T[3 + qt])
        if it == 0:
            for qt in range(3):
                e.valu('v_mov_b32', vr(M + qt), T[qt])
        else:
            for qt in range(3):
                e.valu('v_sub_f32', T[3 + qt], T[qt], vr(M + qt))
            e.valu('v_max3_f32', T[3], T[3], T[4], T[5])
            e.valu('v_cmp_lt_f32', 'vcc', 's62', T[3])
            lskip = newlab()
            e.nop(4)
            e.sop('s_cbranch_vccz %s' % lskip)
            for qt in range(3):
                t = T[qt]
                e.valu('v_max_f32', t, t, vr(M + qt))
                e.valu('v_sub_f32', vr(AL + qt), vr(M + qt), t)
                e.valu('v_mul_f32', vr(AL + qt), SC, vr(AL + qt))
                e.valu('v_exp_f32', vr(AL + qt), vr(AL + qt))
                e.valu('v_mov_b32', vr(M + qt), t)
            for dt in range(8):
                for qt in range(3):
                    for r in range(4):
                        o = vr(O + (dt * 3 + qt) * 4 + r)
                        e.valu('v_mul_f32', o, o, vr(AL + qt))
            for qt in range(3):
                for r in range(4):
                    e.valu('v_mul_f32', vr(LT[qt] + r), vr(LT[qt] + r), vr(AL + qt))
            e.raw(lskip + ':')
            e.nop(2)
        for qt in range(3):
            e.valu('v_mul_f32', T[qt], SC, vr(M + qt))
        for qt in range(3):
            t = T[qt]
            vals = [Sx(kt, qt, r) for kt in range(4) for r in range(4)]
            for v in vals:
                e.valu('v_fma_f32', v, v, SC, '-' + t)
            for v in vals:
                e.valu('v_exp_f32', v, v)
            for tp in range(2):
                a = [Sx(2 * tp, qt, r) for r in range(4)]
                b = [Sx(2 * tp + 1, qt, r) for r in range(4)]
                e.valu('v_cvt_pk_bf16_f32', a[0], a[0], a[1])
                e.valu('v_cvt_pk_bf16_f32', a[1], a[2], a[3])
                e.valu('v_cvt_pk_bf16_f32', a[2], b[0], b[1])
                e.valu('v_cvt_pk_bf16_f32', a[3], b[2], b[3])
        if os.environ.get('SUB') and it == 1:
            stamp()
        for s in range(16):
            if s + 3 < 16:
                vread(s + 3)
            e.wait(lgkm=2 * min(3, 15 - s))
            tp, dt = vsteps[s]
            for qt in range(3):
                d = vr(O + (dt * 3 + qt) * 4, 4)
                e.mfma(d, vr(FR + 4 * (s % 4), 4), Sx(2 * tp, qt), d if (it or tp) else 0)
            if dt == 0:
                for qt in range(3):
                    d = vr(LT[qt], 4)
                    e.mfma(d, vr(ONES, 4), Sx(2 * tp, qt), d if (it or tp) else 0)
        for c in range(4):
            e.valu('v_xor_b32', vr(KA + c), 0x10000, vr(KA + c))
        for dt in range(8):
            e.valu('v_xor_b32', vr(VAD + dt), 0x10000, vr(VAD + dt))
    if PRIO:
        e.sop('s_setprio 0')
    stamp()
    X = 20
    Lr = [FR + 0, FR + 1, FR + 2]
    for qt in range(3):
        e.valu('v_mov_b32', vr(Lr[qt]), vr(LT[qt]))
    e.valu('v_and_b32', 'v1', 63, 'v0')
    e.valu('v_and_b32', 'v2', 15, 'v1')
    e.valu('v_lshrrev_b32', 'v3', 4, 'v1')
    e.valu('v_lshrrev_b32', 'v4', 2, 'v1')
    e.valu('v_and_b32', 'v4', 3, 'v4')
    e.valu('v_and_b32', 'v5', 3, 'v1')
    gemm_addrs()
    e.salu('s_mul_i32', 's14', 's3', 384)
    e.salu('s_add_u32', 's14', 's14', MLBASE)
    e.valu('v_lshlrev_b32', 'v13', 3, 'v2')
    e.valu('v_add_u32', 'v13', 's14', 'v13')
    for qt in range(3):
        e.valu('v_mov_b32', vr(FR + 4 + 2 * qt), vr(M + qt))
        e.valu('v_mov_b32', vr(FR + 5 + 2 * qt), vr(Lr[qt]))
        e.ds_write('ds_write_b64', 'v13', vr(FR + 4 + 2 * qt, 2), qt * 128)
    e.salu('s_xor_b32', 's14', 's3', 4)
    e.salu('s_mul_i32', 's14', 's14', 384)
    e.salu('s_add_u32', 's14', 's14', MLBASE)
    e.valu('v_lshlrev_b32', 'v12', 3, 'v2')
    e.valu('v_add_u32', 'v12', 's14', 'v12')
    e.salu('s_mul_i32', 's14', 's3', 12288)
    e.salu('s_add_u32', 's14', 's14', XCHG)
    e.valu('v_add_u32', 'v13', 's14', 'v6')
    e.salu('s_xor_b32', 's14', 's3', 4)
    e.salu('s_mul_i32', 's14', 's14', 12288)
    e.salu('s_add_u32', 's14', 's14', XCHG)
    e.valu('v_add_u32', 'v14', 's14', 'v6')
    e.valu('v_mul_u32_u24', 'v15', PITCH, 'v2')
    e.valu('v_lshlrev_b32', 'v7', 3, 'v3')
    e.valu('v_add_u32', 'v15', 'v15', 'v7')
    e.salu('s_and_b32', 's14', 's3', 3)
    e.salu('s_lshl_b32', 's14', 's14', 8)
    e.salu('s_add_u32', 's14', 's14', XBASE)
    e.valu('v_add_u32', 'v15', 's14', 'v15')
    e.barrier()
    e.scmp('s_cmp_ge_u32', 's3', 4)
    e.sop('s_cbranch_scc1 L_kh1')
    PM = FR + 10
    def xchg(send0, keep0):
        for i in range(12):
            e.ds_write('ds_write_b128', 'v13', vr(O + (send0 * 3) * 4 + i * 4, 4), i * 1024)
        e.wait(lgkm=0)
        e.barrier()
        for qt in range(3):
            e.ds_read('ds_read_b64', vr(PM + 2 * qt, 2), 'v12', qt * 128)
        XR = [X + 4 * i for i in range(11)] + [92]
        for i in range(12):
            e.ds_read('ds_read_b128', vr(XR[i], 4), 'v14', i * 1024)
        e.wait(lgkm=12)
        T = [vr(x) for x in TT]
        for qt in range(3):
            pm = vr(PM + 2 * qt); pl = vr(PM + 2 * qt + 1)
            mn = T[3]; fs = vr(AL + qt); fo = T[qt]
            e.valu('v_max_f32', mn, pm, vr(M + qt))
            e.valu('v_sub_f32', fs, vr(M + qt), mn)
            e.valu('v_mul_f32', fs, SC, fs)
            e.valu('v_exp_f32', fs, fs)
            e.valu('v_sub_f32', fo, pm, mn)
            e.valu('v_mul_f32', fo, SC, fo)
            e.valu('v_exp_f32', fo, fo)
            e.valu('v_mul_f32', mn, vr(Lr[qt]), fs)
            e.valu('v_fma_f32', mn, pl, fo, mn)
            e.valu('v_rcp_f32', mn, mn)
            e.valu('v_mul_f32', fs, fs, mn)
            e.valu('v_mul_f32', fo, fo, mn)
        e.wait(lgkm=0)
        for dd in range(4):
            for qt in range(3):
                a = O + ((keep0 + dd) * 3 + qt) * 4
                p = XR[dd * 3 + qt]
                for r in range(4):
                    e.valu('v_mul_f32', vr(a + r), vr(a + r), vr(AL + qt))
                    e.valu('v_fma_f32', vr(a + r), vr(p + r), T[qt], vr(a + r))
                e.valu('v_cvt_pk_bf16_f32', vr(a), vr(a), vr(a + 1))
                e.valu('v_cvt_pk_bf16_f32', vr(a + 1), vr(a + 2), vr(a + 3))
                e.ds_write('ds_write_b64', 'v15', vr(a, 2), qt * 16 * PITCH + (keep0 + dd) * 32)
    xchg(4, 0)
    e.sop('s_branch L_khdone')
    e.raw('L_kh1:')
    e.nop(4)
    xchg(0, 4)
    e.raw('L_khdone:')
    e.wait(vm=0, lgkm=0)
    e.barrier()
    stamp()
    e.salu('s_mul_i32', 's62', 's3', 4 * PITCH)
    e.salu('s_lshr_b32', 's13', 's3', 1)
    e.salu('s_lshl_b32', 's13', 's13', 7)
    e.salu('s_add_u32', 's62', 's62', 's13')
    e.salu('s_add_u32', 's62', 's62', RING)
    e.salu('s_lshl_b32', 's63', 's4', 19)
    e.salu('s_lshl_b32', 's13', 's3', 12)
    e.salu('s_add_u32', 's63', 's63', 's13')
    for ch in range(2):
        for f in wdma_parts('s[48:51]', 's63', 1024, ch, 4, 's62'):
            f()
    gemm_loop('s[48:51]', 's63', 1024, False)
    e.salu('s_mul_i32', 's15', 's2', 49152)
    e.salu('s_mul_i32', 's14', 's3', 6144)
    e.salu('s_add_u32', 's15', 's15', 's14')
    for qt in range(3):
        for np_ in range(2):
            a0 = ACC + ((2 * np_) * 3 + qt) * 4
            a1 = ACC + ((2 * np_ + 1) * 3 + qt) * 4
            d = 64 + (qt * 2 + np_) * 4
            e.valu('v_cvt_pk_bf16_f32', vr(d), vr(a0), vr(a0 + 1))
            e.valu('v_cvt_pk_bf16_f32', vr(d + 1), vr(a0 + 2), vr(a0 + 3))
            e.valu('v_cvt_pk_bf16_f32', vr(d + 2), vr(a1), vr(a1 + 1))
            e.valu('v_cvt_pk_bf16_f32', vr(d + 3), vr(a1 + 2), vr(a1 + 3))
            e.bstore('buffer_store_dwordx4', vr(d, 4), 'v6', 's[56:59]', 's15', (qt * 2 + np_) * 1024 if (qt * 2 + np_) < 4 else 0) if (qt * 2 + np_) < 4 else None
            if (qt * 2 + np_) >= 4:
                e.salu('s_add_u32', 's14', 's15', (qt * 2 + np_) * 1024)
                e.bstore('buffer_store_dwordx4', vr(d, 4), 'v6', 's[56:59]', 's14', 0)
    stamp()
    e.wait(vm=0)
    stamp()
    stamp_flush()
    e.raw('L_end1:')
    e.raw('    s_endpgm')

    e.hist = []
    e.raw('.globl %s' % K2)
    e.raw('.p2align 8')
    e.raw('.type %s,@function' % K2)
    e.raw('%s:' % K2)
    e.scmp('s_cmp_ge_u32', 's2', 384)
    e.sop('s_cbranch_scc1 L_end2')
    e.smem('s_load_dwordx2 s[4:5], s[0:1], 80', 's[4:5]')
    e.smem('s_load_dwordx2 s[8:9], s[0:1], 96', 's[8:9]')
    e.valu('v_lshrrev_b32', 'v1', 6, 'v0')
    e.valu('v_and_b32', 'v2', 63, 'v0')
    e.rfl('s3', 'v1')
    e.salu('s_mul_i32', 's12', 's2', 43691)
    e.salu('s_lshr_b32', 's12', 's12', 19)
    e.salu('s_mul_i32', 's13', 's12', 12)
    e.salu('s_sub_u32', 's13', 's2', 's13')
    e.salu('s_lshl_b32', 's13', 's13', 2)
    e.salu('s_add_u32', 's13', 's13', 's3')
    e.salu('s_mul_i32', 's14', 's13', 43)
    e.salu('s_lshr_b32', 's14', 's14', 8)
    e.salu('s_mul_i32', 's15', 's14', 6)
    e.salu('s_sub_u32', 's15', 's13', 's15')
    e.valu('v_lshlrev_b32', 'v3', 4, 'v2')
    e.salu('s_mul_i32', 's16', 's12', 8 * 49152)
    e.salu('s_lshl_b32', 's17', 's13', 10)
    e.salu('s_add_u32', 's16', 's16', 's17')
    e.salu('s_and_b32', 's18', 's12', 15)
    e.salu('s_mul_i32', 's18', 's18', 48 * 2048)
    e.salu('s_lshr_b32', 's19', 's12', 4)
    e.salu('s_lshl_b32', 's19', 's19', 10)
    e.salu('s_add_u32', 's18', 's18', 's19')
    e.salu('s_lshl_b32', 's19', 's14', 7)
    e.salu('s_add_u32', 's18', 's18', 's19')
    e.salu('s_lshr_b32', 's19', 's15', 1)
    e.salu('s_lshl_b32', 's19', 's19', 15)
    e.salu('s_add_u32', 's18', 's18', 's19')
    e.salu('s_and_b32', 's19', 's15', 1)
    e.salu('s_lshl_b32', 's19', 's19', 6)
    e.salu('s_add_u32', 's18', 's18', 's19')
    e.valu('v_and_b32', 'v4', 15, 'v2')
    e.valu('v_lshlrev_b32', 'v4', 11, 'v4')
    e.valu('v_lshrrev_b32', 'v5', 4, 'v2')
    e.valu('v_lshlrev_b32', 'v5', 3, 'v5')
    e.valu('v_add_u32', 'v4', 'v4', 'v5')
    e.wait(lgkm=0)
    e.salu('s_mov_b32', 's6', 16 * 48 * 1024 * 2)
    e.salu('s_mov_b32', 's7', 0x20000)
    e.salu('s_mov_b32', 's10', 256 * 49152)
    e.salu('s_mov_b32', 's11', 0x20000)
    for hh in range(8):
        e.salu('s_add_u32', 's20', 's16', hh * 49152)
        e.bload('buffer_load_dwordx4', vr(8 + hh * 4, 4), 'v3', 's[8:11]', 's20', 0)
    for hh in range(8):
        e.wait(vm=7 - hh)
        for i in range(4):
            src = vr(8 + hh * 4 + i)
            if hh == 0:
                e.valu('v_lshlrev_b32', vr(40 + 2 * i), 16, src)
                e.valu('v_and_b32', vr(41 + 2 * i), 0xffff0000, src)
            else:
                e.valu('v_lshlrev_b32', 'v48', 16, src)
                e.valu('v_and_b32', 'v49', 0xffff0000, src)
                e.valu('v_add_f32', vr(40 + 2 * i), vr(40 + 2 * i), 'v48')
                e.valu('v_add_f32', vr(41 + 2 * i), vr(41 + 2 * i), 'v49')
    for i in range(4):
        e.valu('v_cvt_pk_bf16_f32', vr(50 + i), vr(40 + 2 * i), vr(41 + 2 * i))
    e.bstore('buffer_store_dwordx2', 'v[50:51]', 'v4', 's[4:7]', 's18', 0)
    e.bstore('buffer_store_dwordx2', 'v[52:53]', 'v4', 's[4:7]', 's18', 32)
    e.raw('L_end2:')
    e.raw('    s_endpgm')

    e.raw('.section .rodata,"a"')
    for (k, nv) in ((K1, 256), (K2, 56)):
        e.raw('.p2align 6')
        e.raw('.amdhsa_kernel %s' % k)
        e.raw('  .amdhsa_next_free_vgpr %d' % nv)
        e.raw('  .amdhsa_next_free_sgpr 102')
        e.raw('  .amdhsa_accum_offset %d' % nv)
        e.raw('  .amdhsa_group_segment_fixed_size 0')
        e.raw('  .amdhsa_kernarg_size 104')
        e.raw('  .amdhsa_user_sgpr_count 2')
        e.raw('  .amdhsa_user_sgpr_kernarg_segment_ptr 1')
        e.raw('  .amdhsa_system_sgpr_workgroup_id_x 1')
        e.raw('.end_amdhsa_kernel')
    hdr = header()
    hdr.append('; @launch kernel=%s grid=(256,1,1) block=(512,1,1) lds=%d' % (K1, LDS_BYTES))
    hdr.append('; @launch kernel=%s grid=(384,1,1) block=(256,1,1) lds=0' % K2)
    return '\n'.join(hdr) + '\n' + e.text()

if __name__ == '__main__':
    out = sys.argv[1] if len(sys.argv) > 1 else 'cdna_kernels/%s.s' % NAME
    open(out, 'w').write(gen())
    print('written', out)
```
